```python
import torch

def _softmax(x, axis=-1):
    return torch.softmax(x, dim=axis)
def _gelu(x):
    return torch.nn.functional.gelu(x, approximate="tanh")
def _silu(x):
    return torch.nn.functional.silu(x)
def _sigmoid(x):
    return torch.sigmoid(x)
def _layernorm(x, axis=-1, eps=1e-5):
    m = x.mean(dim=axis, keepdim=True)
    v = x.var(dim=axis, keepdim=True, unbiased=False)
    return (x - m) / torch.sqrt(v + eps)
def _scatter_add(tgt, idx, src, axis=0):
    return tgt.clone().index_add_(axis, idx, src)
def _segment_sum(src, seg, n):
    out = torch.zeros((n,) + src.shape[1:], dtype=src.dtype)
    return out.index_add_(0, seg, src)
def _pad(x, pw):
    flat = tuple(v for pair in reversed(pw) for v in pair)
    return torch.nn.functional.pad(x, flat)

kernel_name = 'gated_mix__grouped_kv_mqa__mixer_channel_mlp__prompt'

def setup_inputs():

    _w = (lambda a: (lambda t: t.to(torch.bfloat16) if t.is_floating_point() else t)(torch.as_tensor(a)))
    def _A_setup():
        B, S, D, H = 1, 2048, 576, 32
        Dh = D // H
        return {
            "x": _w((lambda *s: torch.randn(*s, dtype=torch.bfloat16) * 0.05)(B, S, D)),
            "wq": _w((lambda *s: torch.randn(*s, dtype=torch.bfloat16) * 0.8)(D, H * Dh)),
            "wk": _w((lambda *s: torch.randn(*s, dtype=torch.bfloat16) * 0.8)(D, Dh)),
            "wv": _w((lambda *s: torch.randn(*s, dtype=torch.bfloat16) * 0.2)(D, Dh)),
            "wo": _w((lambda *s: torch.randn(*s, dtype=torch.bfloat16) * 0.2)(H * Dh, D)),
        }
    _A_in = _A_setup()

    def _B_setup():
        B, S, D, F = 1, 2048, 576, 4608
        return {
            "x": _w((lambda *s: torch.randn(*s, dtype=torch.bfloat16) * 0.05)(B, S, D)),
            "w1": _w((lambda *s: torch.randn(*s, dtype=torch.bfloat16) * 0.8)(D, F) * (D ** -0.5)),
            "b1": _w((lambda *s: torch.randn(*s, dtype=torch.bfloat16) * 0.8)(F)),
            "w2": _w((lambda *s: torch.randn(*s, dtype=torch.bfloat16) * 0.05)(F, D) * (F ** -0.5)),
            "b2": _w((lambda *s: torch.randn(*s, dtype=torch.bfloat16) * 0.05)(D)),
        }
    _B_in = _B_setup()

    return {
        "A_x": _A_in["x"],
        "A_wq": _A_in["wq"],
        "A_wk": _A_in["wk"],
        "A_wv": _A_in["wv"],
        "A_wo": _A_in["wo"],
        "B_x": _B_in["x"],
        "B_w1": _B_in["w1"],
        "B_b1": _B_in["b1"],
        "B_w2": _B_in["w2"],
        "B_b2": _B_in["b2"],
        "gate_w": _w((lambda *s: torch.randn(*s, dtype=torch.bfloat16) * 0.05)(576) * 16.0),
    }

def reference(A_x, A_wq, A_wk, A_wv, A_wo, B_x, B_w1, B_b1, B_w2, B_b2, gate_w):
    def _A_ref(x, wq, wk, wv, wo):
        B, S, D = x.shape
        H = 32
        Dh = D // H
        q = (lambda x, *d: x.permute(*d))((x @ wq).reshape(B, S, H, Dh), 0, 2, 1, 3)
        k = x @ wk
        v = x @ wv
        scores = torch.einsum("bhqd,bkd->bhqk", q, k) * (Dh ** -0.5)
        p = _softmax(scores, axis=-1)
        o = torch.einsum("bhqk,bkd->bhqd", p, v)
        return (lambda x, *d: x.permute(*d))(o, 0, 2, 1, 3).reshape(B, S, H * Dh) @ wo

    def _B_ref(x, w1, b1, w2, b2):
        y = _layernorm(x, axis=-1)
        h = _gelu(torch.einsum("bsd,df->bsf", y, w1) + b1)
        return torch.einsum("bsf,fd->bsd", h, w2) + b2

    x = A_x
    g = _sigmoid((x * gate_w).sum(-1, keepdims=True))
    a = _A_ref(x, A_wq, A_wk, A_wv, A_wo)
    b = _B_ref(x, B_w1, B_b1, B_w2, B_b2)
    return g * a + (1 - g) * b
```

```python
class Asm:
    def __init__(self):
        self.lines = []
        self._lab = 0
    def e(self, s):
        for ln in s.strip("\n").split("\n"):
            self.lines.append("  " + ln.strip())
    def label(self, name):
        self.lines.append(name + ":")
    def newlabel(self, base="L"):
        self._lab += 1
        return f"{base}_{self._lab}"
    def comment(self, s):
        self.lines.append("  ; " + s)
    def raw(self, s):
        self.lines.append(s)
    def text(self):
        return "\n".join(self.lines) + "\n"

def vr(b, n=1):
    return f"v{b}" if n == 1 else f"v[{b}:{b+n-1}]"
def sr(b, n=1):
    return f"s{b}" if n == 1 else f"s[{b}:{b+n-1}]"

def f32bits(x):
    import struct
    return struct.unpack("<I", struct.pack("<f", x))[0]
def hexf(x):
    return f"0x{f32bits(x):08x}"

def kernel_header(a, name):
    a.raw(f".globl {name}")
    a.raw(".p2align 8")
    a.raw(f".type {name},@function")
    a.raw(f"{name}:")

def kernel_desc(name, vgpr, sgpr=102, accum=None):
    accum = accum if accum is not None else ((vgpr + 3) // 4) * 4
    return f""".amdhsa_kernel {name}
  .amdhsa_next_free_vgpr {vgpr}
  .amdhsa_next_free_sgpr {sgpr}
  .amdhsa_accum_offset {min(accum,256)}
  .amdhsa_group_segment_fixed_size 0
  .amdhsa_kernarg_size 112
  .amdhsa_user_sgpr_count 2
  .amdhsa_user_sgpr_kernarg_segment_ptr 1
  .amdhsa_system_sgpr_workgroup_id_x 1
.end_amdhsa_kernel
"""
```

```python
from asmlib import *
import math

WS_QREC = 0
WS_KV   = 0x400000
WS_KMAX = 0x480000
WS_G    = 0x481000
WS_PART = 0x800000
QREC_SZ = 1536
CSCALE = math.log2(math.e) / math.sqrt(18.0)
LOG2E = math.log2(math.e)
K1_LDS = 3 * 46080

def gen_k1(a):
    N = "k1_kernel"
    kernel_header(a, N)
    XB = 18432
    BUF = 46080
    STG = BUF
    SROW = 208
    ADR, INC, ACC, BF, AF, GA = 4, 16, 32, 48, 84, 112
    a.e(f"""
    s_cmp_ge_u32 s2, 256
    s_cbranch_scc1 K1_END
    s_load_dwordx4 s[4:7], s[0:1], 0
    s_load_dwordx4 s[8:11], s[0:1], 16
    s_load_dwordx2 s[12:13], s[0:1], 80
    s_load_dwordx2 s[14:15], s[0:1], 104
    s_lshr_b32 s16, s2, 3
    s_and_b32 s17, s2, 7
    v_lshrrev_b32 v1, 6, v0
    v_and_b32 v2, 63, v0
    s_nop 0
    v_readfirstlane_b32 s18, v1
    s_mov_b32 s30, {(2**32 + 17)//18}
    s_mov_b32 s31, {(2**32 + 11)//12}
    s_waitcnt lgkmcnt(0)
    """)
    a.e(f"""
    s_cmp_eq_u32 s17, 2
    s_cselect_b32 s19, 1, 0
    s_cmp_ge_u32 s18, 6
    s_cselect_b32 s19, s19, 0
    s_cmp_eq_u32 s19, 0
    s_cbranch_scc1 K1_NOGATE_LD
    v_lshrrev_b32 v3, 5, v2
    v_lshlrev_b32 v3, 4, v3            ; hf*16
    """)
    for s in range(36):
        a.e(f"global_load_dwordx4 {vr(GA+4*s,4)}, v3, s[12:13] offset:{32*s}")
    a.label("K1_NOGATE_LD")
    a.e(f"""
    s_cmp_lt_u32 s18, 3
    s_cbranch_scc0 K1_WADDR
    s_mul_i32 s26, s18, 6
    s_lshl_b32 s27, s16, 6             ; 64*rb
    v_mov_b32 v29, s5
    """)
    for i in range(6):
        a.e(f"""
        s_add_u32 s28, s26, {i}
        s_lshl_b32 s{20+i}, s28, 10
        s_lshl_b32 s28, s28, 6
        v_add_u32 v22, s28, v2
        v_mul_hi_u32 v23, v22, s30
        v_mul_u32_u24 v3, 18, v23
        v_sub_u32 v22, v22, v3
        v_add_u32 v23, s27, v23
        v_mul_u32_u24 v23, 1152, v23
        v_lshl_add_u32 v22, v22, 4, v23
        v_mov_b32 v{INC+i}, 288
        v_add_co_u32 v{ADR+2*i}, vcc, s4, v22
        v_addc_co_u32 v{ADR+1+2*i}, vcc, 0, v29, vcc
        """)
    a.e("s_branch K1_ADDR_DONE")
    a.label("K1_WADDR")
    a.e(f"""
    s_sub_u32 s26, s18, 3
    s_mul_i32 s26, s26, 6
    s_cmp_eq_u32 s17, 1
    s_cselect_b32 s28, s10, s8
    s_cselect_b32 s29, s11, s9
    s_mul_i32 s27, s17, 144
    """)
    for i in range(6):
        a.e(f"""
        s_add_u32 s32, s26, {i}
        s_sub_u32 s33, s32, 3
        s_cmp_ge_u32 s32, 27
        s_cselect_b32 s32, s33, s32
        s_lshl_b32 s{20+i}, s32, 10
        s_add_u32 s{20+i}, s{20+i}, {XB}
        s_lshl_b32 s32, s32, 6
        v_add_u32 v22, s32, v2
        v_mul_hi_u32 v23, v22, s31         ; row
        v_mul_u32_u24 v3, 12, v23
        v_sub_u32 v22, v22, v3             ; c
        v_mul_u32_u24 v24, 1152, v23
        v_lshl_add_u32 v24, v22, 4, v24
        v_add_u32 v24, s27, v24            ; offA
        v_mul_u32_u24 v25, 36, v23
        v_subrev_u32 v26, 9, v22           ; ex
        v_lshlrev_b32 v27, 4, v26
        v_min_u32 v27, 20, v27
        v_add_u32 v25, v25, v27            ; offB
        v_cmp_le_u32 vcc, 9, v22           ; sel = c>=9
        v_mov_b32 v26, s6
        v_mov_b32 v27, s28
        v_cndmask_b32 v24, v24, v25, vcc
        v_cndmask_b32 v26, v26, v27, vcc
        v_mov_b32 v25, s7
        v_mov_b32 v27, s29
        v_cndmask_b32 v25, v25, v27, vcc
        v_mov_b32 v27, {144*1152}
        v_mov_b32 v3, {144*36}
        v_cndmask_b32 v{INC+i}, v27, v3, vcc
        v_add_co_u32 v{ADR+2*i}, vcc, v26, v24
        v_addc_co_u32 v{ADR+1+2*i}, vcc, 0, v25, vcc
        """)
    a.label("K1_ADDR_DONE")

    def issue(buf):
        for i in range(6):
            a.e(f"""
            s_add_u32 m0, s{20+i}, {buf*BUF}
            s_nop 0
            global_load_lds_dwordx4 {vr(ADR+2*i,2)}, off
            v_add_co_u32 v{ADR+2*i}, vcc, v{ADR+2*i}, v{INC+i}
            v_addc_co_u32 v{ADR+1+2*i}, vcc, 0, v{ADR+1+2*i}, vcc
            """)
    issue(0); issue(1); issue(2)

    a.e(f"""
    s_mul_hi_u32 s34, s18, {(2**32+2)//3}   ; w/3
    s_mul_i32 s35, s34, 3
    s_sub_u32 s35, s18, s35                 ; T
    s_sub_u32 s36, s18, 6
    s_cmp_ge_u32 s18, 6
    s_cselect_b32 s34, s36, s34             ; rt
    v_lshrrev_b32 v22, 5, v2                ; hf
    v_bfe_u32 v23, v2, 4, 1                 ; chalf
    v_bfe_u32 v24, v2, 2, 2                 ; r
    v_and_b32 v25, 3, v2                    ; c
    v_lshl_add_u32 v26, v22, 3, v24         ; 8hf + r
    v_mul_u32_u24 v26, 192, v26
    v_lshl_add_u32 v26, v23, 5, v26
    v_lshl_add_u32 v26, v25, 3, v26
    s_lshl_b32 s36, s35, 6
    s_add_u32 s36, s36, {XB}
    v_add_u32 v30, s36, v26
    v_and_b32 v26, 31, v2
    s_lshl_b32 s36, s34, 5
    v_add_u32 v26, s36, v26
    v_mul_u32_u24 v26, 288, v26
    v_lshl_add_u32 v31, v22, 4, v26
    """)
    for i in range(16):
        a.e(f"v_mov_b32 v{ACC+i}, 0")
    a.e(f"""
    s_cmp_lt_u32 s18, 6
    s_cselect_b32 s37, 1, s19               ; s37 = computes
    """)

    def compute(q, buf):
        lab = f"K1_SKIPC{q}"; labg = f"K1_GATEC{q}"
        a.e(f"""
        s_cmp_eq_u32 s37, 0
        s_cbranch_scc1 {lab}
        v_add_u32 v28, {buf*BUF}, v30
        v_add_u32 v29, {buf*BUF}, v31
        """)
        for s in range(9):
            a.e(f"ds_read_b128 {vr(BF+4*s,4)}, v29 offset:{32*s}")
        a.e(f"""
        s_cmp_eq_u32 s19, 1
        s_cbranch_scc1 {labg}
        """)
        for s in range(9):
            a.e(f"ds_read_b64_tr_b16 {vr(AF+4*s,2)}, v28 offset:{s*3072}")
            a.e(f"ds_read_b64_tr_b16 {vr(AF+4*s+2,2)}, v28 offset:{s*3072+768}")
        a.e("s_waitcnt lgkmcnt(0)")
        for s in range(9):
            a.e(f"v_mfma_f32_32x32x16_bf16 {vr(ACC,16)}, {vr(AF+4*s,4)}, {vr(BF+4*s,4)}, {vr(ACC,16)}")
        a.e(f"s_branch {lab}")
        a.label(labg)
        a.e("s_waitcnt lgkmcnt(0)")
        for s in range(9):
            a.e(f"v_mfma_f32_32x32x16_bf16 {vr(ACC,16)}, {vr(GA+4*(9*q+s),4)}, {vr(BF+4*s,4)}, {vr(ACC,16)}")
        a.label(lab)

    a.e("s_waitcnt vmcnt(12)\ns_barrier")
    compute(0, 0)
    a.e("s_waitcnt vmcnt(6)\ns_barrier")
    issue(0)
    compute(1, 1)
    a.e("s_waitcnt vmcnt(6)\ns_barrier")
    compute(2, 2)
    a.e("s_waitcnt vmcnt(0)\ns_barrier")
    compute(3, 0)

    a.e(f"""
    s_nop 15
    s_cmp_ge_u32 s18, 6
    s_cbranch_scc1 K1_NOSTAGE
    s_mov_b32 s40, {hexf(CSCALE)}
    s_cmp_eq_u32 s35, 2
    s_cselect_b32 s41, 1.0, s40
    v_and_b32 v26, 31, v2
    s_lshl_b32 s36, s34, 5
    v_add_u32 v26, s36, v26
    v_mul_u32_u24 v26, {SROW}, v26
    v_lshrrev_b32 v22, 5, v2
    v_lshl_add_u32 v26, v22, 3, v26
    s_lshl_b32 s36, s35, 6
    s_add_u32 s36, s36, {STG}
    v_add_u32 v28, s36, v26
    """)
    for g in range(4):
        sc = "s40" if g == 0 else "s41"
        for i in range(4):
            a.e(f"v_mul_f32 v{ACC+4*g+i}, {sc}, v{ACC+4*g+i}")
        a.e(f"v_cvt_pk_bf16_f32 v{BF+2*g}, v{ACC+4*g}, v{ACC+4*g+1}")
        a.e(f"v_cvt_pk_bf16_f32 v{BF+2*g+1}, v{ACC+4*g+2}, v{ACC+4*g+3}")
        a.e(f"ds_write_b64 v28, {vr(BF+2*g,2)} offset:{16*g}")
    a.label("K1_NOSTAGE")
    a.e(f"""
    s_cmp_eq_u32 s19, 0
    s_cbranch_scc1 K1_NOGATE_OUT
    v_mul_f32 v22, {hexf(-LOG2E)}, v{ACC}
    v_exp_f32 v22, v22
    s_nop 0
    v_add_f32 v22, 1.0, v22
    v_rcp_f32 v22, v22
    s_lshl_b32 s36, s16, 6
    s_lshl_b32 s38, s34, 5
    s_add_u32 s36, s36, s38
    s_lshl_b32 s36, s36, 2
    s_add_u32 s36, s36, {WS_G}
    v_lshl_add_u32 v23, v2, 2, s36
    v_cmp_gt_u32 vcc, 32, v2
    s_and_saveexec_b64 s[42:43], vcc
    global_store_dword v23, v22, s[14:15]
    s_mov_b64 exec, s[42:43]
    """)
    a.label("K1_NOGATE_OUT")
    a.e("s_waitcnt lgkmcnt(0)\ns_barrier")

    def norm_sum(dst, regs, tmp):
        a.e(f"v_mov_b32 v{dst}, 0")
        for r in regs:
            a.e(f"v_dot2_f32_bf16 v{dst}, v{r}, v{r}, v{dst}")
        a.e(f"""
        s_nop 3
        v_mov_b32 v{tmp}, v{dst}
        s_nop 1
        v_permlane32_swap_b32 v{dst}, v{tmp}
        s_nop 1
        v_add_f32 v{dst}, v{dst}, v{tmp}
        """)
    a.e(f"""
    s_and_b32 s36, s18, 3                   ; hh
    s_lshr_b32 s38, s18, 2                  ; rt
    v_and_b32 v26, 31, v2
    s_lshl_b32 s39, s38, 5
    v_add_u32 v26, s39, v26
    v_mul_u32_u24 v26, {SROW}, v26          ; row*SROW
    v_lshrrev_b32 v22, 5, v2                ; hf
    s_mul_i32 s39, s36, 36
    s_add_u32 s39, s39, {STG}
    v_add_u32 v27, s39, v26
    v_lshl_add_u32 v28, v22, 3, v27         ; + 8hf
    ds_read2_b32 v[48:49], v28 offset0:0 offset1:1
    ds_read2_b32 v[50:51], v28 offset0:4 offset1:5
    ds_read_b32 v52, v27 offset:32
    v_cmp_eq_u32 vcc, 0, v22
    s_waitcnt lgkmcnt(0)
    v_cndmask_b32 v52, 0, v52, vcc
    """)
    norm_sum(53, [48, 49, 50, 51, 52], 54)
    a.e(f"""
    v_sqrt_f32 v53, v53
    s_lshl_b32 s39, s2, 1
    s_add_u32 s39, s39, s38
    s_lshl_b32 s39, s39, 2
    s_add_u32 s39, s39, s36
    s_mul_i32 s39, s39, {QREC_SZ}
    s_add_u32 s39, s39, {WS_QREC}
    v_lshl_add_u32 v23, v2, 4, s39
    v_lshl_add_u32 v24, v2, 2, s39
    global_store_dwordx4 v23, v[48:51], s[14:15]
    global_store_dword v24, v52, s[14:15] offset:1024
    global_store_dword v24, v53, s[14:15] offset:1280
    """)
    a.e(f"""
    s_cmp_lg_u32 s17, 0
    s_cbranch_scc1 K1_NOK
    s_cmp_ge_u32 s18, 2
    s_cbranch_scc1 K1_NOK
    v_and_b32 v26, 31, v2
    s_lshl_b32 s39, s18, 5
    v_add_u32 v26, s39, v26
    v_mul_u32_u24 v26, {SROW}, v26
    v_add_u32 v27, {STG+144}, v26
    v_lshl_add_u32 v28, v22, 3, v27
    ds_read2_b32 v[56:57], v28 offset0:0 offset1:1
    ds_read2_b32 v[58:59], v28 offset0:4 offset1:5
    ds_read_b32 v60, v27 offset:44
    v_cmp_eq_u32 vcc, 0, v22
    s_waitcnt lgkmcnt(0)
    v_cndmask_b32 v60, 0, v60, vcc
    """)
    norm_sum(61, [56, 57, 58, 59, 60], 62)
    a.e(f"""
    v_mov_b32 v62, 0x3f803f80
    v_cmp_eq_u32 vcc, 0, v22
    s_nop 1
    v_cndmask_b32 v60, v62, v60, vcc
    """)
    for x in [1, 2, 4, 8, 16]:
        a.e(f"""
        ds_swizzle_b32 v62, v61 offset:{(x<<10)|0x1f}
        s_waitcnt lgkmcnt(0)
        v_max_f32 v61, v61, v62
        """)
    a.e(f"""
    s_lshl_b32 s39, s16, 1
    s_add_u32 s39, s39, s18
    s_lshl_b32 s40, s39, 12
    s_add_u32 s40, s40, {WS_KV}
    v_lshl_add_u32 v23, v2, 4, s40
    v_lshl_add_u32 v24, v2, 2, s40
    global_store_dwordx4 v23, v[56:59], s[14:15]
    global_store_dword v24, v60, s[14:15] offset:3072
    s_lshl_b32 s39, s39, 2
    s_add_u32 s39, s39, {WS_KMAX}
    v_mov_b32 v23, s39
    v_cmp_eq_u32 vcc, 0, v2
    s_and_saveexec_b64 s[42:43], vcc
    global_store_dword v23, v61, s[14:15]
    s_mov_b64 exec, s[42:43]
    """)
    a.label("K1_NOK")
    a.e(f"""
    s_cmp_lg_u32 s17, 1
    s_cbranch_scc1 K1_END
    s_cmp_ge_u32 s18, 2
    s_cbranch_scc1 K1_END
    v_lshrrev_b32 v22, 5, v2                ; hf
    v_bfe_u32 v23, v2, 4, 1                 ; chalf
    v_bfe_u32 v24, v2, 2, 2                 ; r
    v_and_b32 v25, 3, v2                    ; c
    v_lshl_add_u32 v26, v22, 2, v24         ; 4hf + r
    s_lshl_b32 s39, s18, 5
    v_add_u32 v26, s39, v26
    v_mul_u32_u24 v26, {SROW}, v26
    v_lshlrev_b32 v25, 3, v25
    v_add_u32 v25, 144, v25
    v_mov_b32 v27, 184
    v_cmp_eq_u32 vcc, 1, v23
    s_nop 1
    v_cndmask_b32 v25, v25, v27, vcc
    v_add_u32 v26, v26, v25
    v_add_u32 v28, {STG}, v26
    ds_read_b64_tr_b16 v[64:65], v28 offset:0
    ds_read_b64_tr_b16 v[66:67], v28 offset:{8*SROW}
    ds_read_b64_tr_b16 v[68:69], v28 offset:{16*SROW}
    ds_read_b64_tr_b16 v[70:71], v28 offset:{24*SROW}
    v_and_b32 v25, 31, v2                   ; m
    v_mov_b32 v27, 0x3f803f80
    v_cmp_eq_u32 s[44:45], 16, v25          ; ones
    v_cmp_eq_u32 s[46:47], 17, v25
    v_cmp_le_u32 vcc, 20, v25
    s_nop 1
    s_or_b64 s[46:47], s[46:47], vcc
    s_waitcnt lgkmcnt(0)
    """)
    for r in range(64, 72):
        a.e(f"v_cndmask_b32 v{r}, v{r}, v27, s[44:45]")
        a.e(f"v_cndmask_b32 v{r}, v{r}, 0, s[46:47]")
    a.e(f"""
    s_lshl_b32 s39, s16, 1
    s_add_u32 s39, s39, s18
    s_lshl_b32 s40, s39, 12
    s_add_u32 s40, s40, {WS_KV}
    v_lshl_add_u32 v23, v2, 4, s40
    global_store_dwordx4 v23, v[64:67], s[14:15] offset:1024
    global_store_dwordx4 v23, v[68:71], s[14:15] offset:2048
    """)
    a.label("K1_END")
    a.e("s_endpgm")
```

```python
from asmlib import *
from k1 import WS_QREC, WS_KV, WS_KMAX, WS_G, WS_PART, QREC_SZ, LOG2E
import math

KS = 2080
YH = 0
RING = 36 * KS
RINGW = 18432
SLAB = 9216
OPB = RING + 4 * RINGW
CNT = OPB + 6 * KS
K2_LDS = CNT + 64
C_Y, C_G1, C_H, C_G2, C_X, C_O = 0, 4, 8, 12, 16, 20

GC2 = -2.0 * math.sqrt(2.0 / math.pi) * LOG2E
GC1 = GC2 * 0.044715

S_RB, S_J, S_W = 28, 29, 30
S_OFF, S_STEP, S_M0B, S_IT = 31, 32, 33, 34
S_T0, S_T1, S_T2, S_T3 = 35, 36, 37, 38

def lds_sync_setup(a, vcnt, vone):
    a.e(f"v_mov_b32 v{vcnt}, {CNT}\nv_mov_b32 v{vone}, 1")
def arrive(a, vcnt, vone, off):
    a.e(f"""
    s_waitcnt lgkmcnt(0)
    s_mov_b64 exec, 1
    ds_add_u32 v{vcnt}, v{vone} offset:{off}
    s_mov_b64 exec, -1
    """)
def wait_cnt(a, vcnt, vtmp, off, target):
    L = a.newlabel("WAITC"); D = a.newlabel("WAITD")
    a.e("s_mov_b32 s39, 0x40000")
    a.label(L)
    a.e(f"""
    ds_read_b32 v{vtmp}, v{vcnt} offset:{off}
    s_waitcnt lgkmcnt(0)
    v_readfirstlane_b32 s{S_T3}, v{vtmp}
    s_cmp_ge_u32 s{S_T3}, {target}
    s_cbranch_scc1 {D}
    s_sleep 1
    s_sub_u32 s39, s39, 1
    s_cmp_lg_u32 s39, 0
    s_cbranch_scc1 {L}
    """)
    a.label(D)

V_LANE = 1
V_B, V_BX, V_A, V_AX, V_OM, V_OX = 2, 3, 4, 8, 9, 10
V_CNT, V_ONE, V_T = 11, 12, 13
SETA = [16, 40]; SETB = [32, 56]
AX, BX = 64, 68
V_G = 84
V_OM2, V_OX2 = 90, 91
V_OMW, V_OMWH, V_OOB = 92, 93, 94
V_OXW = 95
ACC = 112
def acc(t, rt): return ACC + (t * 2 + rt) * 16
def accx(rt, rh): return 240 + (rt * 2 + rh) * 4

def dma_piece(a, slot_off, voff, soff_sgpr=None, imm_soff=None):
    a.e(f"s_add_u32 m0, s{S_M0B}, {slot_off}")

class GemmGen:
    def __init__(self, a, permuted):
        self.a = a
        self.perm = permuted
    def reads_main(self, b, ks, dst, bimm):
        L = []
        second = 2048 if self.perm else 1024
        for rt in range(2):
            L.append(f"ds_read_b128 {vr(SETB[dst]+4*rt,4)}, v{V_B} offset:{bimm + rt*1024}")
        for t in range(4):
            base = b * SLAB + ks * 4096
            L.append(f"ds_read_b64_tr_b16 {vr(SETA[dst]+4*t,2)}, v{V_A+t} offset:{base}")
            L.append(f"ds_read_b64_tr_b16 {vr(SETA[dst]+4*t+2,2)}, v{V_A+t} offset:{base+second}")
        return L
    def reads_extra(self, b, bximm):
        L = []
        second = 256 if self.perm else 128
        L.append(f"ds_read_b64_tr_b16 {vr(AX,2)}, v{V_AX} offset:{b*SLAB + 8192}")
        L.append(f"ds_read_b64_tr_b16 {vr(AX+2,2)}, v{V_AX} offset:{b*SLAB + 8192 + second}")
        for rt in range(2):
            for rh in range(2):
                L.append(f"ds_read_b128 {vr(BX+4*(2*rt+rh),4)}, v{V_BX} offset:{bximm + rt*1024 + rh*256}")
        return L
    def mfmas_main(self, src):
        L = []
        for t in range(4):
            for rt in range(2):
                L.append(f"v_mfma_f32_32x32x16_bf16 {vr(acc(t,rt),16)}, {vr(SETA[src]+4*t,4)}, {vr(SETB[src]+4*rt,4)}, {vr(acc(t,rt),16)}")
        return L
    def mfmas_extra(self):
        L = []
        for rt in range(2):
            for rh in range(2):
                L.append(f"v_mfma_f32_16x16x32_bf16 {vr(accx(rt,rh),4)}, {vr(AX,4)}, {vr(BX+4*(2*rt+rh),4)}, {vr(accx(rt,rh),4)}")
        return L
    def interleave(self, mf, others):
        a = self.a
        n = len(mf)
        k = 0
        per = -(-len(others) // n) if n else 0
        for i, m in enumerate(mf):
            a.e(m)
            for _ in range(per):
                if k < len(others):
                    a.e(others[k]); k += 1
        while k < len(others):
            a.e(others[k]); k += 1
    def dstep(self, b, rel, dma0, dma1, vm0, vm1, next_reads=True, extra_hook=None):
        a = self.a
        a.e(f"s_waitcnt vmcnt({vm0}) lgkmcnt(0)" if vm0 is not None else "s_waitcnt lgkmcnt(0)")
        rd = self.reads_main(b, 1, 1, (rel + 1) * KS) + self.reads_extra(b, rel * KS)
        oth = []
        oth = merge(rd, dma0)
        self.interleave(self.mfmas_main(0), oth)
        a.e(f"s_waitcnt vmcnt({vm1}) lgkmcnt(0)" if vm1 is not None else "s_waitcnt lgkmcnt(0)")
        if extra_hook: extra_hook()
        rd = self.reads_main(1 - b, 0, 0, (rel + 2) * KS) if next_reads else []
        oth = merge(rd, dma1)
        self.interleave(self.mfmas_main(1) + self.mfmas_extra(), oth)

def merge(x, y):
    if not y: return list(x)
    if not x: return list(y)
    out = []
    step = len(x) / len(y)
    yi = 0
    for i, e in enumerate(x):
        out.append(e)
        while yi < len(y) and (yi + 0.5) * step <= i + 1:
            out.append(y[yi]); yi += 1
    while yi < len(y):
        out.append(y[yi]); yi += 1
    return out

def dma_regular(b, phase, vom, vox):
    L = []
    if phase == 0:
        for p in range(4):
            L.append(f"s_add_u32 m0, s{S_M0B}, {b*SLAB + p*1024}\nbuffer_load_dwordx4 v{vom}, s[4:7], s{S_OFF} offen lds\ns_add_u32 s{S_OFF}, s{S_OFF}, s{S_STEP}".replace("\nbuffer", "\ns_nop 0\nbuffer") )
    else:
        for p in range(4, 8):
            L.append(f"s_add_u32 m0, s{S_M0B}, {b*SLAB + p*1024}\ns_nop 0\nbuffer_load_dwordx4 v{vom}, s[4:7], s{S_OFF} offen lds\ns_add_u32 s{S_OFF}, s{S_OFF}, s{S_STEP}")
        L.append(f"s_add_u32 m0, s{S_M0B}, {b*SLAB + 8192}\ns_lshl_b32 s{S_T0}, s{S_STEP}, 3\ns_sub_u32 s{S_T0}, s{S_OFF}, s{S_T0}\nbuffer_load_dwordx4 v{vox}, s[4:7], s{S_T0} offen lds")
    return L

def dma_wo(slab, b, phase):
    L = []
    rng = range(4) if phase == 0 else range(4, 8)
    for pp in rng:
        p = 8 * slab + pp
        m = p % 6
        so = (18 * (p // 6) + 4 * m) * 1152
        voff = V_OMW if m <= 3 else (V_OMWH if m == 4 else V_OOB)
        if m == 5: so = 0
        L.append(f"s_add_u32 m0, s{S_M0B}, {b*SLAB + pp*1024}\ns_mov_b32 s{S_T0}, {so}\nbuffer_load_dwordx4 v{voff}, s[16:19], s{S_T0} offen lds")
    if phase == 1:
        L.append(f"s_add_u32 m0, s{S_M0B}, {b*SLAB + 8192}\ns_nop 0\nbuffer_load_dwordx4 v{V_OXW+slab}, s[16:19], 0 offen lds")
    return L

def mk_srd(a, s, lo, hi, size):
    a.e(f"""
    s_mov_b32 s{s}, s{lo}
    s_and_b32 s{s+1}, s{hi}, 0xffff
    s_mov_b32 s{s+2}, {size}
    s_mov_b32 s{s+3}, 0x00020000
    """)

def gen_mlp(a):
    L = V_LANE
    a.e(f"""
    s_load_dwordx2 s[48:49], s[0:1], 32      ; wo
    s_load_dwordx2 s[50:51], s[0:1], 0
    s_load_dwordx4 s[52:55], s[0:1], 48      ; w1, b1
    s_load_dwordx4 s[56:59], s[0:1], 64      ; w2, b2
    s_load_dwordx2 s[60:61], s[0:1], 104     ; ws
    s_waitcnt lgkmcnt(0)
    """)
    a.e(f"""
    s_mul_i32 s{S_T0}, s{S_J}, 1152
    s_add_u32 s52, s52, s{S_T0}
    s_addc_u32 s53, s53, 0
    s_sub_u32 s{S_T1}, {576*9216}, s{S_T0}
    """)
    mk_srd(a, 8, 52, 53, f"s{S_T1}")
    a.e(f"""
    s_mul_i32 s{S_T0}, s{S_J}, {576*1152}
    s_add_u32 s56, s56, s{S_T0}
    s_addc_u32 s57, s57, 0
    """)
    mk_srd(a, 12, 56, 57, 576*1152)
    a.e(f"""
    s_mul_i32 s{S_T0}, s{S_J}, {72*1152}
    s_add_u32 s48, s48, s{S_T0}
    s_addc_u32 s49, s49, 0
    """)
    mk_srd(a, 16, 48, 49, 72*1152)
    mk_srd(a, 20, 60, 61, 0x10000000)
    a.e(f"""
    s_mul_i32 s{S_T0}, s{S_RB}, {64*1152}
    s_add_u32 s50, s50, s{S_T0}
    s_addc_u32 s51, s51, 0
    """)
    mk_srd(a, 24, 50, 51, 64*1152)
    lds_sync_setup(a, V_CNT, V_ONE)
    X = 112
    a.e(f"""
    v_lshrrev_b32 v13, 4, v{L}               ; l>>4
    v_and_b32 v14, 15, v{L}                  ; i
    v_mul_u32_u24 v15, 1152, v13
    v_lshl_add_u32 v16, v14, 4, v15          ; voff = (l>>4)*1152 + i*16
    v_mov_b32 v17, 0x80000000
    v_cmp_gt_u32 vcc, 8, v14
    v_add_u32 v18, 1024, v16
    s_nop 0
    v_cndmask_b32 v17, v17, v18, vcc
    s_mul_i32 s{S_T0}, s{S_W}, {16*1152}
    """)
    for q in range(4):
        a.e(f"s_add_u32 s{S_T1}, s{S_T0}, {q*4608}")
        for p in range(5):
            if p < 4:
                a.e(f"buffer_load_dwordx4 {vr(X+(q*5+p)*4,4)}, v16, s[24:27], s{S_T1} offen offset:{p*256}")
            else:
                a.e(f"buffer_load_dwordx4 {vr(X+(q*5+p)*4,4)}, v17, s[24:27], s{S_T1} offen")
    a.e(f"""
    v_lshlrev_b32 v15, 2, v13
    v_xor_b32 v15, v14, v15
    v_lshlrev_b32 v15, 4, v15
    s_lshl_b32 s{S_T1}, s{S_W}, 8
    v_add_u32 v15, s{S_T1}, v15              ; swz + 256w
    v_mul_u32_u24 v18, 9216, v13
    v_add_u32 v{V_OM}, v18, v15
    v_mul_u32_u24 v18, 1152, v13
    v_add_u32 v{V_OM2}, v18, v15
    v_mov_b32 v{V_OMW}, v{V_OM2}
    v_mov_b32 v{V_OOB}, 0x80000000
    v_cmp_gt_u32 vcc, 2, v13
    s_nop 1
    v_cndmask_b32 v{V_OMWH}, v{V_OOB}, v{V_OM2}, vcc
    v_lshrrev_b32 v18, 1, v{L}               ; row 0..31
    v_and_b32 v19, 1, v{L}
    v_lshlrev_b32 v19, 4, v19
    s_lshl_b32 s{S_T1}, s{S_W}, 5
    s_add_u32 s{S_T1}, s{S_T1}, 1024
    v_add_u32 v19, s{S_T1}, v19              ; 1024 + 32w + 16(l&1)
    v_mul_u32_u24 v20, 9216, v18
    v_add_u32 v{V_OX}, v20, v19
    v_mul_u32_u24 v20, 1152, v18
    v_add_u32 v{V_OX2}, v20, v19
    """)
    for sl in range(3):
        a.e(f"""
        v_add_u32 v20, {32*sl}, v18
        v_mul_u32_u24 v21, 2731, v20
        v_lshrrev_b32 v21, 16, v21            ; /24
        v_mul_u32_u24 v22, 24, v21
        v_sub_u32 v22, v20, v22               ; d
        v_mul_u32_u24 v21, 18, v21
        v_add_u32 v21, v21, v22
        v_mul_u32_u24 v21, 1152, v21
        v_add_u32 v21, v21, v19
        v_cmp_gt_u32 vcc, 18, v22
        s_nop 1
        v_cndmask_b32 v{V_OXW+sl}, v{V_OOB}, v21, vcc
        """)
    a.e(f"""
    s_mul_i32 s{S_M0B}, s{S_W}, {RINGW}
    s_add_u32 s{S_M0B}, s{S_M0B}, {RING}
    s_mov_b32 s4, s8
    s_mov_b32 s5, s9
    s_mov_b32 s6, s10
    s_mov_b32 s7, s11
    s_mov_b32 s{S_OFF}, 0
    s_mov_b32 s{S_STEP}, {4*9216}
    """)
    for b in range(2):
        for ph in range(2):
            for s in dma_regular(b, ph, V_OM, V_OX): a.e(s)
    a.e("s_waitcnt vmcnt(18)")
    F = 16
    SUM, VAR = 56, 60
    a.e(f"v_mov_b32 v64, 0x3f803f80")
    for q in range(4):
        a.e(f"v_mov_b32 v{SUM+q}, 0")
    for i in range(20):
        for q in range(4):
            a.e(f"v_dot2_f32_bf16 v{SUM+q}, v{X+q*20+i}, v64, v{SUM+q}")
    a.e("s_nop 3")
    for ror in [8, 4, 2, 1]:
        for q in range(4):
            a.e(f"v_add_f32_dpp v{SUM+q}, v{SUM+q}, v{SUM+q} row_ror:{ror} row_mask:0xf bank_mask:0xf")
        a.e("s_nop 0")
    for q in range(4):
        a.e(f"v_mul_f32 v{SUM+q}, {hexf(1.0/576)}, v{SUM+q}")
    a.e(f"""
    v_lshrrev_b32 v65, 1, v14
    v_mul_u32_u24 v65, {KS}, v65
    v_and_b32 v66, 1, v14
    v_lshl_add_u32 v65, v66, 9, v65
    v_lshl_add_u32 v65, v13, 4, v65
    s_lshr_b32 s{S_T0}, s{S_W}, 1
    s_lshl_b32 s{S_T0}, s{S_T0}, 10
    s_and_b32 s{S_T1}, s{S_W}, 1
    s_lshl_b32 s{S_T1}, s{S_T1}, 8
    s_add_u32 s{S_T0}, s{S_T0}, s{S_T1}
    s_add_u32 s{S_T0}, s{S_T0}, {YH}
    v_add_u32 v65, s{S_T0}, v65
    v_add_u32 v66, {4*8*KS}, v65
    v_cmp_gt_u32 s[40:41], 8, v14
    """)
    for q in range(4):
        xq = X + q * 20
        for i in range(20):
            a.e(f"v_lshlrev_b32 v{F+2*i}, 16, v{xq+i}")
            a.e(f"v_and_b32 v{F+2*i+1}, 0xffff0000, v{xq+i}")
        a.e(f"v_sub_f32 v67, 0, v{SUM+q}\nv_mov_b32 v68, 0\nv_mov_b32 v69, 0")
        a.e(f"v_mov_b32 v70, v67\nv_mov_b32 v71, v67")
        for i in range(20):
            a.e(f"v_pk_add_f32 {vr(F+2*i,2)}, {vr(F+2*i,2)}, v[70:71]")
        for i in range(32, 40):
            a.e(f"v_cndmask_b32 v{F+i}, 0, v{F+i}, s[40:41]")
        for i in range(20):
            a.e(f"v_pk_fma_f32 v[68:69], {vr(F+2*i,2)}, {vr(F+2*i,2)}, v[68:69]")
        a.e(f"v_add_f32 v68, v68, v69\ns_nop 1")
        for ror in [8, 4, 2, 1]:
            a.e(f"v_add_f32_dpp v68, v68, v68 row_ror:{ror} row_mask:0xf bank_mask:0xf\ns_nop 1")
        a.e(f"""
        v_mov_b32 v69, {hexf(1e-5)}
        v_fmac_f32 v69, {hexf(1.0/576)}, v68
        v_rsq_f32 v70, v69
        s_nop 0
        v_mov_b32 v71, v70
        """)
        for i in range(20):
            a.e(f"v_pk_mul_f32 {vr(F+2*i,2)}, {vr(F+2*i,2)}, v[70:71]")
        for i in range(20):
            a.e(f"v_cvt_pk_bf16_f32 v{xq+i}, v{F+2*i}, v{F+2*i+1}")
        for p in range(4):
            a.e(f"ds_write_b128 v65, {vr(xq+4*p,4)} offset:{p*8*KS + q*64}")
        a.e(f"s_mov_b64 exec, s[40:41]\nds_write_b128 v66, {vr(xq+16,4)} offset:{q*64}\ns_mov_b64 exec, -1")
    arrive(a, V_CNT, V_ONE, C_Y)

    def init_bias(ptr_lo, ptr_hi, base_off_sgpr, size):
        mk_srd(a, 24, ptr_lo, ptr_hi, size)
        a.e(f"""
        v_lshrrev_b32 v13, 5, v{L}
        v_lshlrev_b32 v13, 3, v13
        s_lshl_b32 s{S_T0}, s{S_W}, 8
        s_add_u32 s{S_T0}, s{S_T0}, s{base_off_sgpr}
        v_lshrrev_b32 v14, 4, v{L}
        v_lshlrev_b32 v14, 3, v14                 ; q4*8 bytes
        s_lshl_b32 s{S_T1}, s{S_W}, 5
        s_add_u32 s{S_T1}, s{S_T1}, s{base_off_sgpr}
        s_add_u32 s{S_T1}, s{S_T1}, 1024
        """)
        B = 16
        for t in range(4):
            for g in range(4):
                a.e(f"buffer_load_dwordx2 {vr(B+(t*4+g)*2,2)}, v13, s[24:27], s{S_T0} offen offset:{64*t+16*g}")
        a.e(f"buffer_load_dwordx2 {vr(B+32,2)}, v14, s[24:27], s{S_T1} offen")
        a.e("s_waitcnt vmcnt(0)")
        for t in range(4):
            for g in range(4):
                for h in range(2):
                    s = B + (t*4+g)*2 + h
                    for rt in range(2):
                        a.e(f"v_lshlrev_b32 v{acc(t,rt)+4*g+2*h}, 16, v{s}")
                        a.e(f"v_and_b32 v{acc(t,rt)+4*g+2*h+1}, 0xffff0000, v{s}")
        for h in range(2):
            for rt in range(2):
                for rh in range(2):
                    a.e(f"v_lshlrev_b32 v{accx(rt,rh)+2*h}, 16, v{B+32+h}")
                    a.e(f"v_and_b32 v{accx(rt,rh)+2*h+1}, 0xffff0000, v{B+32+h}")
    a.e(f"s_mul_i32 s{S_T2}, s{S_J}, 1152")
    init_bias(54, 55, S_T2, 4608*2)

    def setup_addrs(perm):
        a.e(f"""
        v_lshrrev_b32 v13, 5, v{L}               ; hf
        v_bfe_u32 v14, v{L}, 4, 1                ; chalf
        v_bfe_u32 v15, v{L}, 2, 2                ; r
        v_and_b32 v16, 3, v{L}                   ; c
        v_lshl_add_u32 v17, v13, {2 if perm else 3}, v15     ; row
        v_lshlrev_b32 v17, 8, v17                ; *256
        v_lshl_add_u32 v17, v14, 5, v17
        v_lshl_add_u32 v17, v16, 3, v17
        v_add_u32 v17, s{S_M0B}, v17
        """)
        for t in range(4):
            a.e(f"v_xor_b32 v18, {t}, v15\nv_lshl_add_u32 v{V_A+t}, v18, 6, v17")
        if perm:
            a.e(f"""
            v_lshlrev_b32 v18, 4, v13
            v_lshl_add_u32 v18, v14, 2, v18
            v_add_u32 v18, v18, v15
            """)
        else:
            a.e(f"""
            v_lshrrev_b32 v18, 4, v{L}
            v_lshl_add_u32 v18, v18, 3, v15
            """)
        a.e(f"""
        v_lshlrev_b32 v18, 5, v18
        v_lshl_add_u32 v18, v16, 3, v18
        v_add_u32 v{V_AX}, s{S_M0B}, v18
        """)
    def setup_b(base):
        a.e(f"""
        v_lshlrev_b32 v{V_B}, 4, v{L}
        v_add_u32 v{V_B}, {base}, v{V_B}
        v_lshrrev_b32 v13, 5, v{L}
        v_mul_u32_u24 v13, {KS}, v13
        v_bfe_u32 v14, v{L}, 4, 1
        v_lshl_add_u32 v13, v14, 9, v13
        v_and_b32 v14, 15, v{L}
        v_lshl_add_u32 v13, v14, 4, v13
        v_add_u32 v{V_BX}, {base}, v13
        """)
    setup_addrs(False)
    setup_b(YH)
    wait_cnt(a, V_CNT, V_T, C_Y, 4)

    def run_gemm(G, vom, vox, tag, next_dma0, next_dma1, switch, hook=None):
        for s in G.reads_main(0, 0, 0, 0): a.e(s)
        a.e(f"s_mov_b32 s{S_IT}, 8")
        a.raw(".p2align 6")
        a.label(f"{tag}_LOOP")
        for d in range(2):
            hk = None
            G.dstep(d, 2*d, dma_regular(d, 0, vom, vox), dma_regular(d, 1, vom, vox), 9, 9)
        if hook: hook()
        a.e(f"""
        v_add_u32 v{V_B}, {4*KS}, v{V_B}
        v_add_u32 v{V_BX}, {4*KS}, v{V_BX}
        s_sub_u32 s{S_IT}, s{S_IT}, 1
        s_cmp_lg_u32 s{S_IT}, 0
        s_cbranch_scc1 {tag}_LOOP
        """)
        switch()
        G.dstep(0, 0, next_dma0(0), next_dma1(0), 9, 9)
        G.dstep(1, 2, next_dma0(1), next_dma1(1), 9, 9, next_reads=False)

    G1 = GemmGen(a, False)
    def sw1():
        a.e(f"""
        s_mov_b32 s4, s12
        s_mov_b32 s5, s13
        s_mov_b32 s6, s14
        s_mov_b32 s7, s15
        s_mov_b32 s{S_OFF}, 0
        s_mov_b32 s{S_STEP}, {4*1152}
        """)
    run_gemm(G1, V_OM, V_OX, "G1", lambda b: dma_regular(b, 0, V_OM2, V_OX2), lambda b: dma_regular(b, 1, V_OM2, V_OX2), sw1)

    a.e(f"""
    s_mov_b32 s44, {hexf(GC1)}
    s_mov_b32 s45, {hexf(GC1)}
    s_mov_b32 s46, {hexf(GC2)}
    s_mov_b32 s47, {hexf(GC2)}
    v_mov_b32 v30, {hexf(GC2)}
    v_mov_b32 v31, {hexf(GC2)}
    s_nop 15
    """)
    def gelu_group(base, npairs, dst):
        T = [16 + 2*i for i in range(4)]
        E = [24, 26, 28, 20]
        for p0 in range(0, npairs, 2):
            ps = [p for p in (p0, p0+1) if p < npairs]
            for n, p in enumerate(ps):
                x = base + 2*p
                a.e(f"v_pk_mul_f32 {vr(16+4*n,2)}, {vr(x,2)}, {vr(x,2)}")
            for n, p in enumerate(ps):
                a.e(f"v_pk_fma_f32 {vr(16+4*n,2)}, {vr(16+4*n,2)}, s[44:45], v[30:31]")
            for n, p in enumerate(ps):
                x = base + 2*p
                a.e(f"v_pk_mul_f32 {vr(16+4*n,2)}, {vr(16+4*n,2)}, {vr(x,2)}")
            for n, p in enumerate(ps):
                a.e(f"v_exp_f32 v{16+4*n}, v{16+4*n}\nv_exp_f32 v{17+4*n}, v{17+4*n}")
            a.e("s_nop 0") if len(ps) == 1 else None
            for n, p in enumerate(ps):
                a.e(f"v_pk_add_f32 {vr(16+4*n,2)}, {vr(16+4*n,2)}, 1.0 op_sel_hi:[1,0]")
            for n, p in enumerate(ps):
                a.e(f"v_rcp_f32 v{16+4*n}, v{16+4*n}\nv_rcp_f32 v{17+4*n}, v{17+4*n}")
            a.e("s_nop 0") if len(ps) == 1 else None
            for n, p in enumerate(ps):
                x = base + 2*p
                a.e(f"v_pk_mul_f32 {vr(16+4*n,2)}, {vr(16+4*n,2)}, {vr(x,2)}")
            for n, p in enumerate(ps):
                a.e(f"v_cvt_pk_bf16_f32 v{dst+p}, v{16+4*n}, v{17+4*n}")
    for t in range(4):
        for rt in range(2):
            gelu_group(acc(t, rt), 8, acc(t, rt))
    for rt in range(2):
        for rh in range(2):
            gelu_group(accx(rt, rh), 2, accx(rt, rh))
    arrive(a, V_CNT, V_ONE, C_G1)
    a.e(f"""
    v_lshlrev_b32 v13, 4, v{L}
    s_mul_i32 s{S_T0}, s{S_W}, {8*KS}
    s_add_u32 s{S_T0}, s{S_T0}, {YH}
    v_add_u32 v13, s{S_T0}, v13                  ; vH
    v_bfe_u32 v14, v{L}, 4, 1                    ; q4&1
    v_lshlrev_b32 v14, 9, v14
    v_and_b32 v15, 15, v{L}
    v_lshl_add_u32 v14, v15, 4, v14
    v_lshrrev_b32 v15, 5, v{L}                   ; q4>>1
    v_lshl_add_u32 v14, v15, 3, v14
    s_add_u32 s{S_T0}, s{S_W}, 32
    s_mul_i32 s{S_T0}, s{S_T0}, {KS}
    s_add_u32 s{S_T0}, s{S_T0}, {YH}
    v_add_u32 v14, s{S_T0}, v14                  ; vHx
    """)
    wait_cnt(a, V_CNT, 15, C_G1, 4)
    for t in range(4):
        for rt in range(2):
            for h in range(2):
                a.e(f"ds_write_b128 v13, {vr(acc(t,rt)+4*h,4)} offset:{(2*t+h)*KS + rt*1024}")
    for rt in range(2):
        for rh in range(2):
            a.e(f"ds_write_b64 v14, {vr(accx(rt,rh),2)} offset:{rt*1024 + rh*256}")
    arrive(a, V_CNT, V_ONE, C_H)
    a.e(f"s_cmp_eq_u32 s{S_J}, 0\ns_cbranch_scc0 M_ZERO")
    a.e(f"s_mov_b32 s{S_T2}, 0")
    init_bias(58, 59, S_T2, 576*2)
    a.e("s_branch M_INITD")
    a.label("M_ZERO")
    for i in range(144):
        a.e(f"v_mov_b32 v{ACC+i}, 0")
    a.label("M_INITD")
    a.e(f"""
    s_lshl_b32 s{S_T0}, s{S_RB}, 8
    s_add_u32 s{S_T0}, s{S_T0}, {WS_G}
    v_and_b32 v13, 31, v{L}
    v_lshlrev_b32 v13, 2, v13
    v_and_b32 v14, 15, v{L}
    v_lshlrev_b32 v14, 2, v14
    buffer_load_dword v{V_G}, v13, s[20:23], s{S_T0} offen
    buffer_load_dword v{V_G+1}, v13, s[20:23], s{S_T0} offen offset:128
    buffer_load_dword v{V_G+2}, v14, s[20:23], s{S_T0} offen
    buffer_load_dword v{V_G+3}, v14, s[20:23], s{S_T0} offen offset:64
    buffer_load_dword v{V_G+4}, v14, s[20:23], s{S_T0} offen offset:128
    buffer_load_dword v{V_G+5}, v14, s[20:23], s{S_T0} offen offset:192
    """)
    setup_addrs(True)
    setup_b(YH)
    a.e("s_waitcnt vmcnt(0)")
    for i in range(6):
        a.e(f"v_sub_f32 v{V_G+i}, 1.0, v{V_G+i}")
    wait_cnt(a, V_CNT, V_T, C_H, 4)

    G2 = GemmGen(a, True)
    def hook2():
        L1 = a.newlabel("G2H")
        a.e(f"""
        s_cmp_lg_u32 s{S_IT}, 5
        s_cbranch_scc1 {L1}
        s_mov_b64 exec, 1
        ds_add_u32 v{V_CNT}, v{V_ONE} offset:{C_G2}
        s_mov_b64 exec, -1
        """)
        a.label(L1)
    run_gemm(G2, V_OM2, V_OX2, "G2", lambda b: dma_wo(b, b, 0), lambda b: dma_wo(b, b, 1), lambda: None, hook=hook2)

    a.e("s_nop 15")
    for t in range(4):
        for rt in range(2):
            for i in range(16):
                a.e(f"v_mul_f32 v{acc(t,rt)+i}, v{V_G+rt}, v{acc(t,rt)+i}")
    for rt in range(2):
        for rh in range(2):
            for i in range(4):
                a.e(f"v_mul_f32 v{accx(rt,rh)+i}, v{V_G+2+2*rt+rh}, v{accx(rt,rh)+i}")
    setup_b(OPB)
    wait_cnt(a, V_CNT, V_T, C_O, 4)
    for s in G2.reads_main(0, 0, 0, 0): a.e(s)
    G2.dstep(0, 0, dma_wo(2, 0, 0), dma_wo(2, 0, 1), 9, 9)
    G2.dstep(1, 2, [], [], 9, 5)
    G2.dstep(0, 4, [], [], 0, None, next_reads=False)
    a.e(f"""
    s_nop 15
    s_lshl_b32 s{S_T0}, s2, 2
    s_add_u32 s{S_T0}, s{S_T0}, s{S_W}
    s_mul_i32 s{S_T0}, s{S_T0}, {36*1024}
    s_add_u32 s{S_T0}, s{S_T0}, {WS_PART}
    v_lshlrev_b32 v13, 4, v{L}
    """)
    for qd in range(36):
        if qd and qd % 4 == 0:
            a.e(f"s_add_u32 s{S_T0}, s{S_T0}, 4096")
        a.e(f"buffer_store_dwordx4 {vr(ACC+4*qd,4)}, v13, s[20:23], s{S_T0} offen offset:{(qd%4)*1024}")
    a.e("s_endpgm")

KVB = [16, 32]
QA = lambda h: 48 + 8*h
QB = lambda h: 52 + 8*h
P = 80
S = [96, 112]
O = lambda h: 128 + 16*h
AV_16, AV_4 = 2, 3

def gen_att(a):
    L = V_LANE
    a.e(f"""
    s_load_dwordx2 s[60:61], s[0:1], 104
    s_sub_u32 s{S_W}, s{S_W}, 4                 ; w4
    s_and_b32 s31, s{S_W}, 1                    ; rt
    s_lshr_b32 s32, s{S_W}, 1                   ; kh
    v_lshlrev_b32 v{AV_16}, 4, v{L}
    v_lshlrev_b32 v{AV_4}, 2, v{L}
    s_waitcnt lgkmcnt(0)
    """)
    mk_srd(a, 20, 60, 61, 0x10000000)
    lds_sync_setup(a, 11, 12)
    a.e(f"""
    s_lshl_b32 s{S_T0}, s2, 1
    s_add_u32 s{S_T0}, s{S_T0}, s31
    s_mul_i32 s{S_T0}, s{S_T0}, {4*QREC_SZ}
    s_add_u32 s{S_T0}, s{S_T0}, {WS_QREC}
    """)
    NRM = 88
    for h in range(4):
        a.e(f"""
        buffer_load_dwordx4 {vr(QA(h),4)}, v{AV_16}, s[20:23], s{S_T0} offen
        buffer_load_dword v{QB(h)}, v{AV_4}, s[20:23], s{S_T0} offen offset:1024
        buffer_load_dword v{NRM+h}, v{AV_4}, s[20:23], s{S_T0} offen offset:1280
        s_add_u32 s{S_T0}, s{S_T0}, {QREC_SZ}
        """)
    a.e(f"""
    s_mov_b32 s{S_T1}, {WS_KMAX}
    buffer_load_dword v13, v{AV_4}, s[20:23], s{S_T1} offen
    s_lshl_b32 s33, s32, 17                     ; kh*32*4096
    s_add_u32 s33, s33, {WS_KV}
    """)
    def kv_load(buf):
        b = KVB[buf]
        a.e(f"""
        buffer_load_dwordx4 {vr(b,4)}, v{AV_16}, s[20:23], s33 offen
        buffer_load_dword v{b+12}, v{AV_4}, s[20:23], s33 offen offset:3072
        buffer_load_dwordx4 {vr(b+4,4)}, v{AV_16}, s[20:23], s33 offen offset:1024
        buffer_load_dwordx4 {vr(b+8,4)}, v{AV_16}, s[20:23], s33 offen offset:2048
        s_add_u32 s33, s33, 4096
        """)
    kv_load(0)
    a.e(f"""
    s_lshl_b32 s{S_T0}, s{S_RB}, 8
    s_lshl_b32 s{S_T1}, s31, 7
    s_add_u32 s{S_T0}, s{S_T0}, s{S_T1}
    s_add_u32 s{S_T0}, s{S_T0}, {WS_G}
    v_and_b32 v14, 31, v{L}
    v_lshlrev_b32 v14, 2, v14
    buffer_load_dword v92, v14, s[20:23], s{S_T0} offen
    v_lshrrev_b32 v15, 5, v{L}                   ; hf
    v_cmp_eq_u32 s[40:41], 0, v15
    v_mov_b32 v14, 0x00003f80
    s_nop 0
    v_cndmask_b32 v{KVB[0]+13}, 0, v14, s[40:41]
    v_cndmask_b32 v{KVB[1]+13}, 0, v14, s[40:41]
    s_waitcnt vmcnt(0)
    """)
    for x in [1, 2, 4, 8, 16]:
        a.e(f"ds_swizzle_b32 v14, v13 offset:{(x<<10)|0x1f}\ns_waitcnt lgkmcnt(0)\nv_max_f32 v13, v13, v14")
    a.e(f"""
    v_mov_b32 v14, v13
    s_nop 1
    v_permlane32_swap_b32 v13, v14
    s_nop 1
    v_max_f32 v13, v13, v14
    v_sqrt_f32 v13, v13
    s_nop 0
    v_mul_f32 v13, {hexf(1.0 + 2.0**-6)}, v13
    """)
    def set_m(h, vm):
        a.e(f"""
        v_and_b32 v4, 0xffff0000, v{vm}          ; hi
        v_sub_f32 v5, v{vm}, v4
        v_and_b32 v6, 0xffff0000, v5             ; mid
        v_sub_f32 v5, v5, v6
        v_lshrrev_b32 v5, 16, v5                 ; lo>>16
        v_lshrrev_b32 v4, 16, v4
        v_or_b32 v4, v4, v6
        v_cndmask_b32 v{QB(h)}, v4, v{QB(h)}, s[40:41]
        v_cndmask_b32 v{QB(h)+1}, 0, v5, s[40:41]
        """)
    for h in range(4):
        a.e(f"v_mul_f32 v7, v{NRM+h}, v13\nv_sub_f32 v7, 0, v7")
        set_m(h, 7)
    for i in range(64):
        a.e(f"v_mov_b32 v{128+i}, 0")
    for i in range(8):
        a.e(f"v_mov_b32 v{P+i}, 0")
    for i in range(4):
        a.e(f"v_mov_b32 v{KVB[1]+8+i}, 0")

    def qk_a(n_s, h, buf):
        return f"v_mfma_f32_32x32x16_bf16 {vr(S[n_s],16)}, {vr(KVB[buf],4)}, {vr(QA(h),4)}, 0"
    def qk_b(n_s, h, buf):
        return f"v_mfma_f32_32x32x8_bf16 {vr(S[n_s],16)}, {vr(KVB[buf]+12,2)}, {vr(QB(h),2)}, {vr(S[n_s],16)}"
    def pv(h, t, buf):
        return f"v_mfma_f32_32x32x16_bf16 {vr(O(h),16)}, {vr(KVB[buf]+4+4*t,4)}, {vr(P+4*t,4)}, {vr(O(h),16)}"
    def ec(s, g):
        b = S[s] + 4*g
        for i in range(4): a.e(f"v_exp_f32 v{b+i}, v{b+i}")
        a.e(f"v_cvt_pk_bf16_f32 v{P+2*g}, v{b}, v{b+1}")
        a.e(f"v_cvt_pk_bf16_f32 v{P+2*g+1}, v{b+2}, v{b+3}")
    a.e(qk_a(0, 0, 0)); a.e(qk_b(0, 0, 0))
    a.e("s_mov_b32 s34, 16")
    a.e("s_nop 15")
    a.raw(".p2align 6")
    a.label("ATT_LOOP")
    for kb in range(2):
        for h in range(4):
            n = kb*4 + h
            cur, nxt = n % 2, (n + 1) % 2
            nh, nbuf = (h + 1) % 4, (kb if h < 3 else 1 - kb)
            ph, pbuf = (h - 1) % 4, (kb if h > 0 else 1 - kb)
            if h == 3:
                a.e("s_waitcnt vmcnt(0)")
            a.e(qk_a(nxt, nh, nbuf))
            ec(cur, 0)
            a.e(pv(ph, 1, pbuf))
            if h == 0:
                kv_load(1 - kb)
            ec(cur, 1)
            a.e(qk_b(nxt, nh, nbuf))
            ec(cur, 2)
            a.e(pv(h, 0, kb))
            ec(cur, 3)
    a.e(f"""
    s_sub_u32 s34, s34, 1
    s_cmp_lg_u32 s34, 0
    s_cbranch_scc1 ATT_LOOP
    """)
    a.e("s_nop 1")
    a.e(pv(3, 1, 1))
    a.e("s_waitcnt vmcnt(0)\ns_nop 15")
    wait_cnt(a, 11, 13, C_G2, 4)
    a.e(f"""
    s_mul_i32 s{S_T0}, s{S_W}, 6144
    s_add_u32 s{S_T0}, s{S_T0}, {YH}
    v_add_u32 v13, s{S_T0}, v{AV_16}
    s_xor_b32 s{S_T1}, s{S_W}, 2
    s_mul_i32 s{S_T1}, s{S_T1}, 6144
    s_add_u32 s{S_T1}, s{S_T1}, {YH}
    v_add_u32 v14, s{S_T1}, v{AV_16}
    s_cmp_eq_u32 s32, 0
    s_cbranch_scc0 ATT_KH1
    """)
    def xchg(send, keep):
        for n, h in enumerate(send):
            for qd in range(3):
                a.e(f"ds_write_b128 v13, {vr(O(h)+4*qd,4)} offset:{n*3072 + qd*1024}")
        arrive(a, 11, 12, C_X)
        wait_cnt(a, 11, 15, C_X, 4)
        for n, h in enumerate(keep):
            for qd in range(3):
                a.e(f"ds_read_b128 {vr(S[0]+ (n*12) + 4*qd,4)}, v14 offset:{n*3072 + qd*1024}")
        a.e("s_waitcnt lgkmcnt(0)")
        for n, h in enumerate(keep):
            for i in range(12):
                a.e(f"v_add_f32 v{128+12*n+i if False else 16+12*n+i}, v{O(h)+i}, v{S[0]+12*n+i}")
    xchg([2, 3], [0, 1])
    a.e("s_branch ATT_XD")
    a.label("ATT_KH1")
    xchg([0, 1], [2, 3])
    a.label("ATT_XD")
    a.e(f"""
    s_lshl_b32 s{S_T0}, s31, 10
    s_add_u32 s{S_T0}, s{S_T0}, {OPB}
    v_add_u32 v13, s{S_T0}, v{AV_16}             ; + hf*512 + r*16 = l*16
    s_mul_i32 s{S_T1}, s32, {3*KS}
    v_add_u32 v13, s{S_T1}, v13
    """)
    for n in range(2):
        b = 16 + 12*n
        a.e(f"""
        v_mov_b32 v4, v{b+8}
        v_mov_b32 v5, v{b+8}
        s_nop 1
        v_permlane32_swap_b32 v4, v5
        s_nop 1
        v_rcp_f32 v5, v4
        s_nop 0
        v_mul_f32 v5, v5, v92                     ; g / l
        """)
        for i in [0,1,2,3,4,5,6,7,10,11]:
            a.e(f"v_mul_f32 v{b+i}, v5, v{b+i}")
        a.e(f"""
        v_cvt_pk_bf16_f32 v40, v{b}, v{b+1}
        v_cvt_pk_bf16_f32 v41, v{b+2}, v{b+3}
        v_cvt_pk_bf16_f32 v42, v{b+4}, v{b+5}
        v_cvt_pk_bf16_f32 v43, v{b+6}, v{b+7}
        v_cvt_pk_bf16_f32 v44, v{b+10}, v{b+11}
        v_mov_b32 v45, 0
        v_cndmask_b32 v44, 0, v44, s[40:41]
        """)
        for g in range(3):
            x = 3*n + g
            a.e(f"ds_write_b64 v13, {vr(40+2*g,2)} offset:{(x>>1)*KS + 8*(x&1)}")
    arrive(a, 11, 12, C_O)
    a.e("s_endpgm")

def gen_k2(a):
    kernel_header(a, "k2_kernel")
    a.e(f"""
    s_cmp_ge_u32 s2, 256
    s_cbranch_scc1 K2_END
    s_lshr_b32 s{S_RB}, s2, 3
    s_and_b32 s{S_J}, s2, 7
    v_lshrrev_b32 v2, 6, v0
    v_and_b32 v{V_LANE}, 63, v0
    s_nop 0
    v_readfirstlane_b32 s{S_W}, v2
    v_mov_b32 v3, {CNT}
    v_mov_b32 v4, 0
    v_mov_b32 v5, 0
    v_mov_b32 v6, 0
    v_mov_b32 v7, 0
    v_mov_b32 v8, 0
    v_mov_b32 v9, 0
    v_mov_b32 v10, 0
    v_mov_b32 v11, 0
    ds_write_b128 v3, v[4:7]
    ds_write_b128 v3, v[8:11] offset:16
    s_waitcnt lgkmcnt(0)
    s_barrier
    s_cmp_ge_u32 s{S_W}, 4
    s_cbranch_scc1 K2_ATT
    """)
    gen_mlp(a)
    a.label("K2_ATT")
    gen_att(a)
    a.label("K2_END")
    a.e("s_endpgm")
```

```python
from asmlib import *
from k1 import WS_PART
K3_GRID = "(576,1,1)"
K3_VGPR = 96
def gen_k3(a):
    kernel_header(a, "k3_kernel")
    a.e(f"""
    s_cmp_ge_u32 s2, 576
    s_cbranch_scc1 K3_END
    s_load_dwordx2 s[4:5], s[0:1], 104
    s_load_dwordx2 s[6:7], s[0:1], 88
    v_lshrrev_b32 v2, 6, v0
    v_and_b32 v1, 63, v0
    s_nop 0
    v_readfirstlane_b32 s16, v2
    s_lshl_b32 s17, s2, 2
    s_add_u32 s17, s17, s16              ; task 0..2303
    s_mul_hi_u32 s18, s17, {(2**32+17)//18}
    s_mul_i32 s19, s18, 18
    s_sub_u32 s19, s17, s19              ; pair 0..17
    s_lshr_b32 s20, s18, 2               ; rb
    s_and_b32 s21, s18, 3                ; w
    s_waitcnt lgkmcnt(0)
    s_mov_b32 s8, s4
    s_and_b32 s9, s5, 0xffff
    s_mov_b32 s10, 0x10000000
    s_mov_b32 s11, 0x00020000
    s_mov_b32 s12, s6
    s_and_b32 s13, s7, 0xffff
    s_mov_b32 s14, {2048*576*2}
    s_mov_b32 s15, 0x00020000
    s_lshl_b32 s22, s20, 5
    s_add_u32 s22, s22, s21
    s_mul_i32 s22, s22, 36864
    s_lshl_b32 s23, s19, 11
    s_add_u32 s22, s22, s23
    s_add_u32 s22, s22, {WS_PART}
    v_lshlrev_b32 v2, 4, v1
    """)
    for j in range(8):
        a.e(f"buffer_load_dwordx4 {vr(8+8*j,4)}, v2, s[8:11], s22 offen")
        a.e(f"buffer_load_dwordx4 {vr(12+8*j,4)}, v2, s[8:11], s22 offen offset:1024")
        if j < 7: a.e(f"s_add_u32 s22, s22, {4*36864}")
    a.e(f"""
    s_cmp_ge_u32 s19, 16
    s_cbranch_scc1 K3_EXTRA
    s_lshr_b32 s24, s19, 1               ; t*2+rt
    s_and_b32 s25, s24, 1                ; rt
    s_lshr_b32 s24, s24, 1               ; t
    s_and_b32 s26, s19, 1                ; g0/2
    s_lshl_b32 s27, s20, 6
    s_lshl_b32 s28, s25, 5
    s_add_u32 s27, s27, s28
    s_mul_i32 s27, s27, 1152
    s_lshl_b32 s28, s21, 8               ; 128w*2
    s_add_u32 s27, s27, s28
    s_lshl_b32 s28, s24, 6               ; 32t*2
    s_add_u32 s27, s27, s28
    s_lshl_b32 s28, s26, 5               ; 16*g0/2... (8*g0)*2 bytes = 32*(g0/2)
    s_add_u32 s27, s27, s28
    v_and_b32 v3, 31, v1
    v_mul_u32_u24 v3, 1152, v3
    v_lshrrev_b32 v4, 5, v1
    v_lshl_add_u32 v3, v4, 4, v3         ; + hf*16
    """)
    def reduce_():
        for j in range(1, 8):
            a.e(f"s_waitcnt vmcnt({2*(7-j)})")
            for i in range(8):
                a.e(f"v_add_f32 v{8+i}, v{8+i}, v{8+8*j+i}")
    reduce_()
    a.e(f"""
    v_cvt_pk_bf16_f32 v4, v8, v9
    v_cvt_pk_bf16_f32 v5, v10, v11
    v_cvt_pk_bf16_f32 v6, v12, v13
    v_cvt_pk_bf16_f32 v7, v14, v15
    s_nop 1
    v_permlane32_swap_b32 v4, v6
    v_permlane32_swap_b32 v5, v7
    s_nop 1
    buffer_store_dwordx4 v[4:7], v3, s[12:15], s27 offen
    s_endpgm
    """)
    a.label("K3_EXTRA")
    a.e(f"""
    s_sub_u32 s25, s19, 16               ; rt
    s_lshl_b32 s27, s20, 6
    s_lshl_b32 s28, s25, 5
    s_add_u32 s27, s27, s28
    s_mul_i32 s27, s27, 1152
    s_lshl_b32 s28, s21, 5               ; 16w*2
    s_add_u32 s27, s27, s28
    s_add_u32 s27, s27, 1024
    v_and_b32 v3, 15, v1
    v_mul_u32_u24 v3, 1152, v3
    v_lshrrev_b32 v4, 4, v1
    v_lshl_add_u32 v3, v4, 3, v3         ; + q4*8
    """)
    reduce_()
    a.e(f"""
    v_cvt_pk_bf16_f32 v4, v8, v9
    v_cvt_pk_bf16_f32 v5, v10, v11
    v_cvt_pk_bf16_f32 v6, v12, v13
    v_cvt_pk_bf16_f32 v7, v14, v15
    s_add_u32 s28, s27, {16*1152}
    buffer_store_dwordx2 v[4:5], v3, s[12:15], s27 offen
    buffer_store_dwordx2 v[6:7], v3, s[12:15], s28 offen
    """)
    a.label("K3_END")
    a.e("s_endpgm")
```

```python
import sys
from asmlib import *
import k1
def build(which=("k1",)):
    a = Asm()
    hdr = open("gated_mix__grouped_kv_mqa__mixer_channel_mlp__prompt.s.ref").read().split("\n")
    top = [l for l in hdr if l.startswith(";") and "@launch" not in l and "Override launch" not in l and "grid=ceil" not in l]
    launches = []
    descs = []
    a.raw('.amdgcn_target "amdgcn-amd-amdhsa--gfx950"')
    a.raw(".text")
    if "k1" in which:
        k1.gen_k1(a); launches.append(f"; @launch kernel=k1_kernel grid=(256,1,1) block=(512,1,1) lds={k1.K1_LDS}"); descs.append(kernel_desc("k1_kernel", 256))
    if "k2" in which:
        import k2
        k2.gen_k2(a); launches.append(f"; @launch kernel=k2_kernel grid=(256,1,1) block=(512,1,1) lds={k2.K2_LDS}"); descs.append(kernel_desc("k2_kernel", 256))
    if "k3" in which:
        import k3
        k3.gen_k3(a); launches.append(f"; @launch kernel=k3_kernel grid={k3.K3_GRID} block=(256,1,1) lds=0"); descs.append(kernel_desc("k3_kernel", k3.K3_VGPR))
    txt = "\n".join(top) + "\n" + "\n".join(launches) + "\n" + a.text() + '.section .rodata,"a"\n' + "".join(".p2align 6\n" + d for d in descs)
    return txt
if __name__ == "__main__":
    which = sys.argv[1].split(",") if len(sys.argv) > 1 else ["k1"]
    out = sys.argv[2] if len(sys.argv) > 2 else "out.s"
    open(out, "w").write(build(which))
    print("wrote", out)
```

```python
class Asm:
    def __init__(self):
        self.lines = []
        self._lab = 0
    def e(self, s):
        for ln in s.strip("\n").split("\n"):
            self.lines.append("  " + ln.strip())
    def label(self, name):
        self.lines.append(name + ":")
    def newlabel(self, base="L"):
        self._lab += 1
        return f"{base}_{self._lab}"
    def comment(self, s):
        self.lines.append("  ; " + s)
    def raw(self, s):
        self.lines.append(s)
    def text(self):
        return "\n".join(self.lines) + "\n"

def vr(b, n=1):
    return f"v{b}" if n == 1 else f"v[{b}:{b+n-1}]"
def sr(b, n=1):
    return f"s{b}" if n == 1 else f"s[{b}:{b+n-1}]"

def f32bits(x):
    import struct
    return struct.unpack("<I", struct.pack("<f", x))[0]
def hexf(x):
    return f"0x{f32bits(x):08x}"

def kernel_header(a, name):
    a.raw(f".globl {name}")
    a.raw(".p2align 8")
    a.raw(f".type {name},@function")
    a.raw(f"{name}:")

def kernel_desc(name, vgpr, sgpr=102, accum=None):
    accum = accum if accum is not None else ((vgpr + 3) // 4) * 4
    return f""".amdhsa_kernel {name}
  .amdhsa_next_free_vgpr {vgpr}
  .amdhsa_next_free_sgpr {sgpr}
  .amdhsa_accum_offset {min(accum,256)}
  .amdhsa_group_segment_fixed_size 0
  .amdhsa_kernarg_size 112
  .amdhsa_user_sgpr_count 2
  .amdhsa_user_sgpr_kernarg_segment_ptr 1
  .amdhsa_system_sgpr_workgroup_id_x 1
.end_amdhsa_kernel
"""

STAMPS = False
WS_STAMP = 0x3000000
class Stamper:
    def __init__(self, a, kidx):
        self.a = a; self.k = kidx; self.n = 0; self.names = []
    def rstamp(self, idx):
        if not STAMPS: return
        self.a.e(f"s_memrealtime s[98:99]\ns_waitcnt lgkmcnt(0)\ns_mov_b32 s{64+idx}, s98")
    def stamp(self, name, idx=None):
        if not STAMPS: return
        i = self.n if idx is None else idx
        self.n = max(self.n, i + 1)
        while len(self.names) <= i: self.names.append(None)
        self.names[i] = name
        if i == 0:
            for k in range(1, 30): self.a.e(f"s_mov_b32 s{64+k}, 0")
        self.a.e(f"s_memtime s[98:99]\ns_waitcnt lgkmcnt(0)\ns_mov_b32 s{64+i}, s98")
    def flush(self, ws_lo, ws_hi, wave_sgpr, vtmp=250, nwaves_shift=4):
        if not STAMPS: return
        a = self.a
        a.e(f"v_mov_b32 v{vtmp}, 0")
        for i in range(32):
            a.e(f"v_writelane_b32 v{vtmp}, s{64+i}, {i}")
        a.e(f"""
        s_lshl_b32 s98, s2, {nwaves_shift}
        s_add_u32 s98, s98, s{wave_sgpr}
        s_lshl_b32 s98, s98, 8
        s_add_u32 s98, s98, {WS_STAMP + self.k * 0x100000}
        v_mbcnt_lo_u32_b32 v{vtmp+1}, -1, 0
        v_mbcnt_hi_u32_b32 v{vtmp+1}, -1, v{vtmp+1}
        v_lshlrev_b32 v{vtmp+1}, 2, v{vtmp+1}
        v_add_u32 v{vtmp+1}, s98, v{vtmp+1}
        global_store_dword v{vtmp+1}, v{vtmp}, s[{ws_lo}:{ws_hi}]
        s_waitcnt vmcnt(0)
        """)
```

```python
from asmlib import *
import asmlib
import math, os
NO_ATT = bool(os.environ.get('NO_ATT')); NO_MLP = bool(os.environ.get('NO_MLP'))
PRIO_ATT = int(os.environ.get('PRIO_ATT', '0')); PRIO_MLP = int(os.environ.get('PRIO_MLP', '0'))
FORCE_FB = bool(os.environ.get('FORCE_FB'))
PPAT = [int(c) for c in os.environ.get('PPAT', '0000')]
GELU_PRIO = int(os.environ.get('GELU_PRIO', '0'))

KNAME = "gated_mix__grouped_kv_mqa__mixer_channel_mlp__prompt_kernel"
LOG2E = math.log2(math.e)
CSCALE = LOG2E / math.sqrt(18.0)
GC2 = -2.0 * math.sqrt(2.0 / math.pi) * LOG2E
GC1 = GC2 * 0.044715

WS_KV   = 0x000000
WS_KMAX = 0x040000
WS_TAG  = 0x041000
WS_XF   = 0x042000
WS_PART = 0x100000

KS = 2080
XH = 0
RING = 36 * KS
RINGW = 18432
SLAB = 9216
OPB = RING + 4 * RINGW
CNT = OPB + 6 * KS
GW = CNT + 80
GBUF = GW + 1152
STAT = GBUF + 256
LDS_BYTES = STAT + 512
PBUF = 27648
SROW = 192
STG = OPB
C_Y, C_G1, C_H, C_G2, C_X, C_O, C_S, C_FB, C_M, C_TAG = 0, 4, 8, 12, 16, 20, 24, 28, 32, 36
C_PW, C_P, C_ST, C_STAT, C_KV, C_XF = 40, 44, 48, 52, 56, 60
C_XL, C_KVD, C_KVS = 64, 68, 72
XMAP = int(os.environ.get('XMAP', '0'))

S_RB, S_J, S_W = 28, 29, 30
S_OFF, S_STEP, S_M0B, S_IT = 31, 32, 33, 34
S_T0, S_T1, S_T2, S_T3 = 35, 36, 37, 38
S_RT, S_KH, S_KV, S_LP, S_PASS = 31, 32, 33, 34, 46
V_LANE = 1

def mk_srd(a, s, lo, hi, size):
    a.e(f"""
    s_mov_b32 s{s}, s{lo}
    s_and_b32 s{s+1}, s{hi}, 0xffff
    s_mov_b32 s{s+2}, {size}
    s_mov_b32 s{s+3}, 0x00020000
    """)
def arrive(a, vcnt, vone, off, wait=True):
    if wait: a.e("s_waitcnt lgkmcnt(0)")
    a.e(f"""
    s_mov_b64 exec, 1
    ds_add_u32 v{vcnt}, v{vone} offset:{off}
    s_mov_b64 exec, -1
    """)
def wait_cnt(a, vcnt, vtmp, off, target):
    L = a.newlabel("WAITC"); D = a.newlabel("WAITD")
    a.e("s_mov_b32 s39, 0x40000")
    a.label(L)
    a.e(f"""
    ds_read_b32 v{vtmp}, v{vcnt} offset:{off}
    s_waitcnt lgkmcnt(0)
    v_readfirstlane_b32 s{S_T3}, v{vtmp}
    s_cmp_ge_u32 s{S_T3}, {target}
    s_cbranch_scc1 {D}
    s_sleep 1
    s_sub_u32 s39, s39, 1
    s_cmp_lg_u32 s39, 0
    s_cbranch_scc1 {L}
    """)
    a.label(D)

KVW = RING + 2*PBUF
TOUCH = int(os.environ.get('TOUCH', '1'))
def gen_entry(a, ST):
    a.e(f"""
    s_load_dwordx4 s[48:51], s[0:1], 0       ; x, wq
    s_load_dwordx4 s[52:55], s[0:1], 16
    s_load_dwordx2 s[56:57], s[0:1], 80      ; gate_w
    s_load_dwordx4 s[60:63], s[0:1], 96
    """)

def zero_counters(a):
    a.e(f"""
    v_mov_b32 v3, {CNT}
    v_mov_b32 v20, 0
    v_mov_b32 v21, 0
    v_mov_b32 v22, 0
    v_mov_b32 v23, 0
    ds_write_b128 v3, v[20:23]
    ds_write_b128 v3, v[20:23] offset:16
    ds_write_b128 v3, v[20:23] offset:32
    ds_write_b128 v3, v[20:23] offset:48
    ds_write_b128 v3, v[20:23] offset:64
    """)

def gen_x_issue(a, ST):
    L = V_LANE
    a.e(f"s_mov_b32 s40, {(2**32 + 71)//72}")
    for i in range(9):
        a.e(f"""
        v_add_u32 v26, {64*i}, v{L}
        v_mul_hi_u32 v27, v26, s40
        v_mul_u32_u24 v3, 72, v27
        v_sub_u32 v26, v26, v3             ; pos
        v_lshrrev_b32 v28, 1, v27
        v_xor_b32 v28, v28, v26
        v_bfi_b32 v28, 7, v28, v26
        v_mul_u32_u24 v27, 1152, v27
        v_lshl_add_u32 v{4+i}, v28, 4, v27
        v_xor_b32 v28, 4, v28
        v_lshl_add_u32 v{30+i}, v28, 4, v27
        """)
    a.e(f"""
    s_mul_i32 s45, s{S_RB}, {64*1152}
    s_mul_i32 s46, s{S_W}, 18432
    s_add_u32 s45, s45, s46
    s_waitcnt lgkmcnt(0)
    s_add_u32 s42, s48, s45
    s_addc_u32 s43, s49, 0
    """)
    mk_srd(a, 24, 42, 43, 18432)
    a.e("s_mov_b32 s44, 9216")
    for h in range(2):
        for i in range(9):
            a.e(f"""
            s_add_u32 m0, s46, {XH + h*9216 + i*1024}
            s_nop 0
            buffer_load_dwordx4 v{(4 if h == 0 else 30)+i}, s[24:27], {'0' if h == 0 else 's44'} offen lds
            """)
    zero_counters(a)
    a.e(f"""
    s_cmp_lg_u32 s{S_W}, 3
    s_cbranch_scc1 E_NOGW
    v_lshlrev_b32 v3, 4, v{L}
    s_mov_b32 m0, {GW}
    s_nop 0
    global_load_lds_dwordx4 v3, s[56:57]
    s_mov_b64 exec, 0xff
    global_load_lds_dwordx4 v3, s[56:57] offset:1024
    s_mov_b64 exec, -1
    v_mov_b32 v4, 0x3f803f80
    v_mov_b32 v5, 0x3f803f80
    v_mov_b32 v6, 0x3f803f80
    v_mov_b32 v7, 0x3f803f80
    v_add_u32 v3, {XH + 73728}, v3
    ds_write_b128 v3, v[4:7]
    s_mov_b64 exec, 0xff
    ds_write_b128 v3, v[4:7] offset:1024
    s_mov_b64 exec, -1
    """)
    a.label("E_NOGW")
    a.e("s_waitcnt lgkmcnt(0)\ns_barrier")
    ST.stamp('x iss')

def xb_addr(a, L, rt_sgpr, dst):
    a.e(f"v_lshrrev_b32 v26, 5, v{L}\nv_and_b32 v27, 31, v{L}")
    if rt_sgpr is None:
        a.e("v_mul_u32_u24 v28, 1152, v27")
    else:
        a.e(f"s_lshl_b32 s36, s{rt_sgpr}, 5\nv_add_u32 v28, s36, v27\nv_mul_u32_u24 v28, 1152, v28")
    a.e("v_bfe_u32 v29, v27, 1, 3")
    for b in range(4):
        a.e(f"v_add_u32 v30, {2*b}, v26\nv_xor_b32 v30, v30, v29\nv_lshl_add_u32 v{dst+b}, v30, 4, v28")

def norm_sum(a, dst, regs, tmp):
    a.e(f"v_mov_b32 v{dst}, 0")
    for r in regs:
        a.e(f"v_dot2_f32_bf16 v{dst}, v{r}, v{r}, v{dst}")
    a.e(f"""
    s_nop 3
    v_mov_b32 v{tmp}, v{dst}
    s_nop 1
    v_permlane32_swap_b32 v{dst}, v{tmp}
    s_nop 1
    v_add_f32 v{dst}, v{dst}, v{tmp}
    """)

def gen_pre_mlp(a, ST):
    L = V_LANE
    BF, AF, SA = 16, 40, 112
    gen_x_issue(a, ST)
    a.e(f"""
    v_mov_b32 v84, {CNT}
    v_mov_b32 v85, 1
    s_setprio 3
    """)
    a.e(f"s_and_b32 s37, s{S_W}, 1")
    xb_addr(a, L, 37, 4)
    a.e(f"""
    v_and_b32 v27, 31, v{L}
    v_cmp_eq_u32 s[46:47], 1, v27
    v_mov_b32 v28, {GW}
    v_mov_b32 v29, {XH + 73728}
    v_lshrrev_b32 v26, 5, v{L}
    v_cndmask_b32 v28, v28, v29, s[46:47]
    v_lshl_add_u32 v82, v26, 4, v28
    v_bfe_u32 v27, v{L}, 4, 1
    v_bfe_u32 v28, v{L}, 2, 2
    v_and_b32 v29, 3, v{L}
    v_lshl_add_u32 v30, v26, 3, v28          ; 8hf + r
    v_mul_u32_u24 v31, 40, v30
    v_lshl_add_u32 v31, v27, 5, v31
    v_lshl_add_u32 v31, v29, 3, v31
    v_add_u32 v77, {KVW}, v31
    v_lshlrev_b32 v78, 4, v{L}
    v_lshlrev_b32 v79, 2, v{L}
    v_mov_b32 v80, 0
    v_mov_b32 v81, 0
    """)
    mk_srd(a, 20, 62, 63, 0x10000000)
    a.e("s_waitcnt vmcnt(0)")
    arrive(a, 84, 85, C_XL, wait=False)
    wait_cnt(a, 84, 3, C_XL, 4)
    ST.stamp('x landed')
    def chain(kind):
        def rd(s):
            st = s % 4
            r = [f"ds_read_b128 {vr(BF+4*st,4)}, v{4+(s&3)} offset:{128*(s>>2)}"]
            if kind == 0: r.append(f"ds_read_b128 {vr(AF+4*st,4)}, v82 offset:{32*s}")
            return r
        n = 2 if kind == 0 else 1
        for s_ in range(3):
            for x in rd(s_): a.e(x)
        for s_ in range(36):
            issued = min(36, s_ + 3)
            a.e(f"s_waitcnt lgkmcnt({n*(issued - s_ - 1)})")
            st = s_ % 4
            c = "0" if s_ == 0 else vr(SA,16)
            A_ = vr(AF+4*st,4) if kind == 0 else vr(BF+4*st,4)
            a.e(f"v_mfma_f32_32x32x16_bf16 {vr(SA,16)}, {A_}, {vr(BF+4*st,4)}, {c}")
            if s_ + 3 < 36:
                for x in rd(s_ + 3): a.e(x)
        a.e(f"""
        v_and_b32 v26, 31, v{L}
        s_lshl_b32 s36, s37, 5
        v_add_u32 v27, s36, v26                   ; row
        """)
        if kind == 0:
            a.e(f"""
            v_lshlrev_b32 v28, 2, v27
            v_add_u32 v28, {GBUF}, v28
            v_lshlrev_b32 v29, 3, v27
            v_add_u32 v29, {STAT}, v29
            s_nop 7
            s_mov_b32 exec_hi, 0
            ds_write_b32 v29, v{SA+1}
            s_mov_b64 exec, -1
            """)
            arrive(a, 84, 85, C_STAT)
            a.e(f"""
            v_mul_f32 v30, {hexf(-LOG2E)}, v{SA}
            v_exp_f32 v30, v30
            s_nop 0
            v_add_f32 v30, 1.0, v30
            v_rcp_f32 v30, v30
            s_mov_b32 exec_hi, 0
            s_nop 0
            ds_write_b32 v28, v30
            s_mov_b64 exec, -1
            """)
        else:
            a.e(f"""
            v_lshlrev_b32 v29, 3, v27
            v_add_u32 v29, {STAT+4}, v29
            v_and_b32 v30, 1, v26
            v_cmp_ne_u32 s[40:41], 0, v30
            v_and_b32 v30, 2, v26
            v_cmp_ne_u32 s[42:43], 0, v30
            v_and_b32 v30, 8, v26
            v_cmp_ne_u32 s[44:45], 0, v30
            v_and_b32 v30, 16, v26
            v_cmp_ne_u32 s[46:47], 0, v30
            s_nop 1
            """)
            for i in range(8): a.e(f"v_cndmask_b32 v{SA+i}, v{SA+2*i}, v{SA+2*i+1}, s[40:41]")
            for i in range(4): a.e(f"v_cndmask_b32 v{SA+i}, v{SA+2*i}, v{SA+2*i+1}, s[42:43]")
            for i in range(2): a.e(f"v_cndmask_b32 v{SA+i}, v{SA+2*i}, v{SA+2*i+1}, s[44:45]")
            a.e(f"""
            v_cndmask_b32 v{SA}, v{SA}, v{SA+1}, s[46:47]
            v_bfe_u32 v30, v26, 2, 1
            v_lshrrev_b32 v31, 5, v{L}
            v_cmp_eq_u32 s[40:41], v30, v31
            s_nop 1
            s_mov_b64 exec, s[40:41]
            ds_write_b32 v29, v{SA}
            s_mov_b64 exec, -1
            """)
            arrive(a, 84, 85, C_STAT)
    a.e(f"s_cmp_lt_u32 s{S_J}, 2\ns_cbranch_scc1 S_PROD")
    a.e(f"s_cmp_ge_u32 s{S_W}, 2\ns_cbranch_scc1 S_CH1")
    chain(0)
    a.e("s_branch S_DONE")
    a.label("S_CH1")
    chain(1)
    a.e("s_branch S_DONE")
    a.label("S_PROD")
    a.e(f"s_cmp_lt_u32 s{S_W}, 2\ns_cbranch_scc1 S_KV")
    chain(1)
    chain(0)
    a.e("s_branch S_DONE")
    a.label("S_KV")
    wait_cnt(a, 84, 3, C_KVD, 4)
    def kvloop(isK):
        def rd(s):
            st = s % 4
            return [f"ds_read_b128 {vr(BF+4*st,4)}, v{4+(s&3)} offset:{128*(s>>2)}",
                    f"ds_read_b64_tr_b16 {vr(AF+4*st,2)}, v77 offset:{s*640}",
                    f"ds_read_b64_tr_b16 {vr(AF+4*st+2,2)}, v77 offset:{s*640+160}"]
        for s in range(3):
            for x in rd(s): a.e(x)
        for s in range(36):
            issued = min(36, s + 3)
            a.e(f"s_waitcnt lgkmcnt({3*(issued - s - 1)})")
            st = s % 4
            c = "0" if s == 0 else vr(SA,16)
            if isK: a.e(f"v_mfma_f32_32x32x16_bf16 {vr(SA,16)}, {vr(AF+4*st,4)}, {vr(BF+4*st,4)}, {c}")
            else:   a.e(f"v_mfma_f32_32x32x16_bf16 {vr(SA,16)}, {vr(BF+4*st,4)}, {vr(AF+4*st,4)}, {c}")
            if s + 3 < 36:
                for x in rd(s + 3): a.e(x)
    a.e(f"""
    v_lshrrev_b32 v13, 5, v{L}
    v_cmp_eq_u32 s[42:43], 0, v13                 ; hf==0
    s_lshl_b32 s46, s{S_RB}, 1
    s_add_u32 s46, s46, s{S_W}
    s_lshl_b32 s47, s46, 12
    s_add_u32 s47, s47, {WS_KV}
    s_cmp_eq_u32 s{S_J}, 1
    s_cbranch_scc1 S_V
    s_mov_b32 s36, {WS_TAG}
    buffer_load_dword v81, v80, s[20:23], s36 offen sc1
    """)
    kvloop(True)
    arrive(a, 84, 85, C_KVD)
    a.e("s_nop 7")
    B = 128
    for d in range(5):
        a.e(f"v_cvt_pk_bf16_f32 v{B+d}, v{SA+2*d}, v{SA+2*d+1}")
    a.e(f"v_cndmask_b32 v{B+4}, 0, v{B+4}, s[42:43]")
    norm_sum(a, B+5, [B, B+1, B+2, B+3, B+4], B+6)
    a.e(f"""
    v_mov_b32 v13, 0x3f803f80
    v_cndmask_b32 v{B+4}, v13, v{B+4}, s[42:43]
    buffer_store_dwordx4 {vr(B,4)}, v78, s[20:23], s47 offen sc1
    buffer_store_dword v{B+4}, v79, s[20:23], s47 offen offset:3072 sc1
    """)
    for pat in ["quad_perm:[1,0,3,2]", "quad_perm:[2,3,0,1]", "row_ror:4", "row_ror:8"]:
        a.e(f"v_max_f32_dpp v{B+5}, v{B+5}, v{B+5} {pat} row_mask:0xf bank_mask:0xf\ns_nop 1")
    a.e(f"""
    ds_swizzle_b32 v{B+6}, v{B+5} offset:{(16<<10)|0x1f}
    s_waitcnt lgkmcnt(0)
    v_max_f32 v{B+5}, v{B+5}, v{B+6}
    s_lshl_b32 s46, s46, 2
    s_add_u32 s46, s46, {WS_KMAX}
    s_mov_b64 exec, 1
    buffer_store_dword v{B+5}, v80, s[20:23], s46 offen sc1
    s_mov_b64 exec, -1
    s_branch S_KVST
    """)
    a.label("S_V")
    kvloop(False)
    arrive(a, 84, 85, C_KVD)
    a.e(f"""
    v_and_b32 v13, 31, v{L}
    v_mov_b32 v81, 0x3f803f80
    v_cmp_eq_u32 s[40:41], 18, v13
    v_cmp_lt_u32 s[44:45], 18, v13
    s_nop 3
    """)
    for d in range(8):
        a.e(f"v_cvt_pk_bf16_f32 v{B+d}, v{SA+2*d}, v{SA+2*d+1}")
    for d in range(8):
        a.e(f"v_cndmask_b32 v{B+d}, v{B+d}, v81, s[40:41]")
    for d in range(8):
        a.e(f"v_cndmask_b32 v{B+d}, v{B+d}, 0, s[44:45]")
    a.e(f"""
    buffer_store_dwordx4 {vr(B,4)}, v78, s[20:23], s47 offen offset:1024 sc1
    buffer_store_dwordx4 {vr(B+4,4)}, v78, s[20:23], s47 offen offset:2048 sc1
    """)
    a.label("S_KVST")
    ST.stamp('KV st')
    a.e(f"""
    s_waitcnt vmcnt(0)
    s_mov_b64 exec, 1
    ds_add_rtn_u32 v13, v84, v85 offset:{C_KVS}
    s_waitcnt lgkmcnt(0)
    v_readfirstlane_b32 s46, v13
    s_cmp_lg_u32 s46, 1
    s_cbranch_scc1 S_FLD
    v_mov_b32 v13, 1
    s_cmp_lg_u32 s3, 0
    s_cbranch_scc1 S_FLV
    v_add_u32 v13, 1, v81
    v_cmp_eq_u32 s[40:41], 0, v13
    s_mov_b32 s46, {WS_TAG}
    s_nop 0
    v_cndmask_b32 v13, v13, 1, s[40:41]
    s_nop 0
    buffer_store_dword v13, v80, s[20:23], s46 offen sc1
    """)
    a.label("S_FLV")
    a.e(f"""
    s_lshl_b32 s46, s{S_RB}, 3
    s_lshl_b32 s47, s{S_J}, 2
    s_add_u32 s46, s46, s47
    v_mov_b32 v3, s46
    global_store_dword v3, v13, s[60:61] sc1
    """)
    a.label("S_FLD")
    a.e("s_mov_b64 exec, -1")
    ST.stamp('KV pub')
    a.label("S_DONE")
    a.e("s_setprio 0")
    ST.stamp('pre done')

def gen_proj_att(a, ST):
    L = V_LANE
    ACC, BF, AF = 144, 16, 40
    a.e("s_setprio 2")
    a.e(f"""
    s_and_b32 s{S_RT}, s{S_W}, 1
    s_lshr_b32 s{S_KH}, s{S_W}, 1
    s_mov_b32 s41, {(2**32 + 11)//12}
    v_mov_b32 v14, {CNT}
    v_mov_b32 v15, 1
    s_and_b32 s44, s{S_J}, 3
    s_lshl_b32 s44, s44, 4               ; shift = 16*(j&3)
    s_mul_i32 s45, s{S_J}, 144
    s_sub_u32 s45, s45, s44
    """)
    for b in range(3):
        a.e(f"""
        s_add_u32 s46, s{S_W}, {4*b}
        s_lshl_b32 s46, s46, 6
        v_add_u32 v26, s46, v{L}
        v_mul_hi_u32 v27, v26, s41         ; row
        v_mul_u32_u24 v3, 12, v27
        v_sub_u32 v26, v26, v3             ; c
        v_mul_u32_u24 v27, 1152, v27
        v_lshl_add_u32 v27, v26, 4, v27
        v_add_u32 v{8+b}, s45, v27
        """)
    a.e(f"""
    v_lshrrev_b32 v26, 5, v{L}
    v_bfe_u32 v27, v{L}, 4, 1
    v_bfe_u32 v28, v{L}, 2, 2
    v_and_b32 v29, 3, v{L}
    v_lshl_add_u32 v30, v26, 3, v28          ; 8hf + r
    v_mul_u32_u24 v30, 192, v30
    v_lshl_add_u32 v30, v27, 5, v30
    v_lshl_add_u32 v30, v29, 3, v30
    s_mul_i32 s46, s{S_KH}, 72
    s_add_u32 s46, s46, s44
    v_add_u32 v11, s46, v30
    v_add_u32 v12, 32, v11
    """)
    xb_addr(a, L, S_RT, 4)
    a.e(f"s_mov_b32 s40, {(2**32 + 9)//10}")
    for b in range(5):
        a.e(f"""
        s_add_u32 s46, s{S_W}, {4*b}
        s_lshl_b32 s46, s46, 6
        v_add_u32 v26, s46, v{L}
        v_mul_hi_u32 v27, v26, s40
        v_mul_u32_u24 v3, 10, v27
        v_sub_u32 v26, v26, v3
        v_min_u32 v26, 8, v26
        v_mul_u32_u24 v27, 36, v27
        v_lshl_add_u32 v{72+b}, v26, 2, v27
        """)
    zero_counters(a)
    a.e("s_waitcnt lgkmcnt(0)\ns_barrier")
    mk_srd(a, 20, 62, 63, 0x10000000)
    def issue_w(q, buf, tag):
        for i in range(7):
            aa, b = divmod(i, 3)
            if i == 6: a.e(f"s_cmp_ge_u32 s{S_W}, 3\ns_cbranch_scc1 PW_SKIP_{tag}")
            a.e(f"""
            s_lshl_b32 s46, s{S_W}, 10
            s_add_u32 m0, s46, {RING + buf*PBUF + i*4096}
            s_mov_b32 s47, {q*144*1152 + aa*64*1152}
            buffer_load_dwordx4 v{8+b}, s[24:27], s47 offen lds
            """)
        a.label(f"PW_SKIP_{tag}")
    a.e(f"""
    s_cmp_ge_u32 s{S_J}, 2
    s_cbranch_scc1 PA_NOKVI
    s_cmp_eq_u32 s{S_J}, 1
    s_cselect_b32 s42, s54, s52
    s_cselect_b32 s43, s55, s53
    """)
    mk_srd(a, 24, 42, 43, 576*36)
    for i in range(23):
        aa, b = divmod(i, 5)
        if i == 22: a.e(f"s_cmp_ge_u32 s{S_W}, 2\ns_cbranch_scc1 PA_NOKVI")
        a.e(f"""
        s_lshl_b32 s46, s{S_W}, 8
        s_add_u32 m0, s46, {KVW + i*1024}
        s_mov_b32 s47, {aa*128*36}
        buffer_load_dword v{72+b}, s[24:27], s47 offen lds
        """)
    a.label("PA_NOKVI")
    mk_srd(a, 24, 50, 51, 576*1152)
    issue_w(0, 0, "q0"); issue_w(1, 1, "q1")
    a.e(f"s_cmp_lt_u32 s{S_J}, 2\ns_cbranch_scc1 PA_NOQ2")
    issue_w(2, 2, "q2a")
    a.e("s_branch PA_ISS")
    a.label("PA_NOQ2")
    a.e("s_waitcnt vmcnt(12)")
    arrive(a, 14, 15, C_KVD, wait=False)
    a.label("PA_ISS")
    ST.stamp('W iss')
    if TOUCH:
        a.e(f"""
        s_load_dwordx2 s[40:41], s[0:1], 32      ; wo
        s_load_dwordx4 s[44:47], s[0:1], 48      ; w1, b1
        s_load_dwordx4 s[52:55], s[0:1], 64      ; w2, b2
        s_load_dwordx2 s[42:43], s[0:1], 88      ; out
        s_waitcnt lgkmcnt(0)
        s_cmp_eq_u32 s{S_W}, 3
        s_cbranch_scc1 E_T7
        s_mov_b32 s36, {(2**32 + 8)//9}
        v_mul_hi_u32 v26, v{L}, s36
        v_mul_u32_u24 v27, 9, v26
        v_sub_u32 v27, v{L}, v27
        v_min_u32 v26, 3, v26
        v_mul_u32_u24 v26, 9216, v26
        v_lshl_add_u32 v26, v27, 7, v26
        s_and_b32 s36, s{S_RB}, 15
        s_mul_i32 s36, s36, 12
        s_lshl_b32 s37, s{S_W}, 2
        s_add_u32 s36, s36, s37
        s_mul_i32 s36, s36, 9216
        s_mul_i32 s37, s{S_J}, 1152
        s_add_u32 s36, s36, s37
        v_add_u32 v26, s36, v26
        global_load_dword v252, v26, s[44:45]
        s_branch E_NOT
        """)
        a.label("E_T7")
        a.e(f"""
        s_mul_i32 s36, s{S_J}, {576*1152}
        s_add_u32 s52, s52, s36
        s_addc_u32 s53, s53, 0
        s_mul_i32 s36, s{S_J}, {72*1152}
        s_add_u32 s40, s40, s36
        s_addc_u32 s41, s41, 0
        s_mul_i32 s36, s{S_RB}, {64*1152}
        s_add_u32 s42, s42, s36
        s_addc_u32 s43, s43, 0
        s_mul_i32 s36, s3, {72*1024}
        s_add_u32 s36, s36, {WS_PART}
        s_add_u32 s44, s62, s36
        s_addc_u32 s45, s63, 0
        v_mov_b32 v26, s62
        v_mov_b32 v27, s63
        v_writelane_b32 v26, s52, 0
        v_writelane_b32 v27, s53, 0
        v_writelane_b32 v26, s40, 1
        v_writelane_b32 v27, s41, 1
        v_writelane_b32 v26, s46, 2
        v_writelane_b32 v27, s47, 2
        v_writelane_b32 v26, s54, 3
        v_writelane_b32 v27, s55, 3
        v_writelane_b32 v26, s42, 4
        v_writelane_b32 v27, s43, 4
        v_writelane_b32 v26, s44, 6
        v_writelane_b32 v27, s45, 6
        s_mov_b64 exec, 0xff
        global_load_dword v252, v[26:27], off
        s_mov_b64 exec, -1
        """)
        a.label("E_NOT")
    NT = 1 if TOUCH else 0
    wait_cnt(a, 14, 3, C_XL, 4)
    ST.stamp('x landed')
    tgt = [4]
    def wsync(vm):
        a.e(f"s_waitcnt vmcnt({vm})")
        arrive(a, 14, 15, C_PW, wait=True)
        wait_cnt(a, 14, 3, C_PW, tgt[0]); tgt[0] += 4
    def compute(q, buf):
        a.e(f"v_add_u32 v2, {RING + buf*PBUF}, v11\nv_add_u32 v13, {RING + buf*PBUF}, v12")
        def rd(s):
            S = 9*q + s; st = s % 4
            return [f"ds_read_b128 {vr(BF+4*st,4)}, v{4+(S&3)} offset:{128*(S>>2)}",
                    f"ds_read_b64_tr_b16 {vr(AF+8*st,2)}, v2 offset:{s*3072}",
                    f"ds_read_b64_tr_b16 {vr(AF+8*st+2,2)}, v2 offset:{s*3072+768}",
                    f"ds_read_b64_tr_b16 {vr(AF+8*st+4,2)}, v13 offset:{s*3072}",
                    f"ds_read_b64_tr_b16 {vr(AF+8*st+6,2)}, v13 offset:{s*3072+768}"]
        D = 3
        for s in range(D):
            for x in rd(s): a.e(x)
        for s in range(9):
            issued = min(9, s + D)
            a.e(f"s_waitcnt lgkmcnt({5*(issued - s - 1)})")
            st = s % 4
            c0 = "0" if (q == 0 and s == 0) else vr(ACC,16); c1 = "0" if (q == 0 and s == 0) else vr(ACC+16,16)
            a.e(f"v_mfma_f32_32x32x16_bf16 {vr(ACC,16)}, {vr(AF+8*st,4)}, {vr(BF+4*st,4)}, {c0}")
            a.e(f"v_mfma_f32_32x32x16_bf16 {vr(ACC+16,16)}, {vr(AF+8*st+4,4)}, {vr(BF+4*st,4)}, {c1}")
            if s + D < 9:
                for x in rd(s + D): a.e(x)
    a.e(f"s_cmp_lt_u32 s{S_J}, 2\ns_cbranch_scc1 PA_PROD")
    wsync(12 + NT)
    compute(0, 0)
    a.e("s_branch PA_J1")
    a.label("PA_PROD")
    tgt[0] = 4
    wsync(6 + NT)
    compute(0, 0)
    wait_cnt(a, 14, 3, C_KVD, 6)
    issue_w(2, 2, "q2b")
    a.label("PA_J1")
    wsync(6)
    issue_w(3, 0, "q3")
    compute(1, 1)
    wsync(6)
    compute(2, 2)
    wsync(0)
    compute(3, 0)
    arrive(a, 14, 15, C_P)
    ST.stamp('P computed')

V_B, V_BX, V_A, V_AX, V_OM, V_OX = 2, 6, 8, 12, 13, 14
V_T = 15
SETA = [16, 40]; SETB = [32, 56]
AX, BX = 64, 68
V_CNT, V_ONE = 84, 85
V_G = 86
V_OM2, V_OX2 = 92, 93
V_OMW, V_OMWH, V_OOB = 94, 95, 96
V_OXW = 97
V_BI = 100
ACC = 112
def acc(t, rt): return ACC + (t * 2 + rt) * 16
def accx(rt, rh): return 240 + (rt * 2 + rh) * 4

def merge(x, y):
    if not y: return list(x)
    if not x: return list(y)
    out = []; step = len(x) / len(y); yi = 0
    for i, e in enumerate(x):
        out.append(e)
        while yi < len(y) and (yi + 0.5) * step <= i + 1:
            out.append(y[yi]); yi += 1
    while yi < len(y):
        out.append(y[yi]); yi += 1
    return out

class GemmGen:
    def __init__(self, a, mode):
        self.a = a
        self.mode = mode
        self.perm = (mode == 'h')
    def b_main(self, dst, rel):
        if self.mode == 'x':
            return [f"ds_read_b128 {vr(SETB[dst]+4*rt,4)}, v{V_B+(rel&3)} offset:{128*(rel>>2) + rt*36864}" for rt in range(2)]
        return [f"ds_read_b128 {vr(SETB[dst]+4*rt,4)}, v{V_B} offset:{rel*KS + rt*1024}" for rt in range(2)]
    def b_extra(self, rel):
        L = []
        for rt in range(2):
            for rh in range(2):
                if self.mode == 'x':
                    e = (rel >> 1) & 1
                    L.append(f"ds_read_b128 {vr(BX+4*(2*rt+rh),4)}, v{V_BX+e} offset:{128*(rel>>2) + (32*rt+16*rh)*1152}")
                else:
                    L.append(f"ds_read_b128 {vr(BX+4*(2*rt+rh),4)}, v{V_BX} offset:{rel*KS + rt*1024 + rh*256}")
        return L
    def reads_main(self, b, ks, dst, rel):
        L = self.b_main(dst, rel)
        second = 2048 if self.perm else 1024
        for t in range(4):
            base = b * SLAB + ks * 4096
            L.append(f"ds_read_b64_tr_b16 {vr(SETA[dst]+4*t,2)}, v{V_A+t} offset:{base}")
            L.append(f"ds_read_b64_tr_b16 {vr(SETA[dst]+4*t+2,2)}, v{V_A+t} offset:{base+second}")
        return L
    def reads_extra(self, b, rel):
        second = 256 if self.perm else 128
        L = [f"ds_read_b64_tr_b16 {vr(AX,2)}, v{V_AX} offset:{b*SLAB + 8192}",
             f"ds_read_b64_tr_b16 {vr(AX+2,2)}, v{V_AX} offset:{b*SLAB + 8192 + second}"]
        return L + self.b_extra(rel)
    def mfmas_main(self, src):
        return [f"v_mfma_f32_32x32x16_bf16 {vr(acc(t,rt),16)}, {vr(SETA[src]+4*t,4)}, {vr(SETB[src]+4*rt,4)}, {vr(acc(t,rt),16)}"
                for t in range(4) for rt in range(2)]
    def mfmas_extra(self):
        return [f"v_mfma_f32_16x16x32_bf16 {vr(accx(rt,rh),4)}, {vr(AX,4)}, {vr(BX+4*(2*rt+rh),4)}, {vr(accx(rt,rh),4)}"
                for rt in range(2) for rh in range(2)]
    def interleave(self, mf, others):
        a = self.a; n = len(mf); k = 0
        per = -(-len(others) // n) if n else 0
        for m in mf:
            a.e(m)
            for _ in range(per):
                if k < len(others):
                    a.e(others[k]); k += 1
        while k < len(others):
            a.e(others[k]); k += 1
    def dstep(self, b, rel, dma0, dma1, vm0, vm1, next_reads=True):
        a = self.a
        a.e(f"s_waitcnt vmcnt({vm0}) lgkmcnt(0)" if vm0 is not None else "s_waitcnt lgkmcnt(0)")
        rd = self.reads_main(b, 1, 1, rel + 1) + self.reads_extra(b, rel)
        self.interleave(self.mfmas_main(0), merge(rd, dma0))
        a.e(f"s_waitcnt vmcnt({vm1}) lgkmcnt(0)" if vm1 is not None else "s_waitcnt lgkmcnt(0)")
        rd = self.reads_main(1 - b, 0, 0, rel + 2) if next_reads else []
        self.interleave(self.mfmas_main(1) + self.mfmas_extra(), merge(rd, dma1))
    def advance(self):
        a = self.a
        if self.mode == 'x':
            for b in range(4): a.e(f"v_add_u32 v{V_B+b}, 128, v{V_B+b}")
            for e in range(2): a.e(f"v_add_u32 v{V_BX+e}, 128, v{V_BX+e}")
        else:
            a.e(f"v_add_u32 v{V_B}, {4*KS}, v{V_B}\nv_add_u32 v{V_BX}, {4*KS}, v{V_BX}")

def dma_regular(b, phase, vom, vox):
    L = []
    for p in (range(4) if phase == 0 else range(4, 8)):
        L.append(f"s_add_u32 m0, s{S_M0B}, {b*SLAB + p*1024}\ns_nop 0\nbuffer_load_dwordx4 v{vom}, s[4:7], s{S_OFF} offen lds\ns_add_u32 s{S_OFF}, s{S_OFF}, s{S_STEP}")
    if phase == 1:
        L.append(f"s_add_u32 m0, s{S_M0B}, {b*SLAB + 8192}\ns_lshl_b32 s{S_T0}, s{S_STEP}, 3\ns_sub_u32 s{S_T0}, s{S_OFF}, s{S_T0}\nbuffer_load_dwordx4 v{vox}, s[4:7], s{S_T0} offen lds")
    return L
def dma_wo(slab, b, phase):
    L = []
    for pp in (range(4) if phase == 0 else range(4, 8)):
        p = 8 * slab + pp
        m = p % 6
        so = (18 * (p // 6) + 4 * m) * 1152
        voff = V_OMW if m <= 3 else (V_OMWH if m == 4 else V_OOB)
        if m == 5: so = 0
        L.append(f"s_add_u32 m0, s{S_M0B}, {b*SLAB + pp*1024}\ns_mov_b32 s{S_T0}, {so}\nbuffer_load_dwordx4 v{voff}, s[16:19], s{S_T0} offen lds")
    if phase == 1:
        L.append(f"s_add_u32 m0, s{S_M0B}, {b*SLAB + 8192}\ns_nop 0\nbuffer_load_dwordx4 v{V_OXW+slab}, s[16:19], 0 offen lds")
    return L

def gen_reduce(a, ST, wave_expr_sgpr, vb=16):
    L = V_LANE
    P1 = a.newlabel("XFP"); P2 = a.newlabel("XFD"); P3 = a.newlabel("XFW")
    a.e(f"""
    v_mov_b32 v{vb+2}, {CNT}
    v_mov_b32 v{vb+3}, 1
    s_cmp_lg_u32 s{wave_expr_sgpr}, 7
    s_cbranch_scc1 {P3}
    s_lshl_b32 s{S_T0}, s{S_RB}, 7
    s_add_u32 s{S_T0}, s{S_T0}, {WS_XF}
    v_and_b32 v{vb}, 7, v{L}
    v_lshlrev_b32 v{vb}, 2, v{vb}
    s_mov_b32 s39, 0x100000
    """)
    a.label(P1)
    a.e(f"""
    buffer_load_dword v{vb+1}, v{vb}, s[20:23], s{S_T0} offen sc1
    s_waitcnt vmcnt(0)
    v_cmp_ne_u32 vcc, s47, v{vb+1}
    s_nop 1
    s_cmp_eq_u64 vcc, 0
    s_cbranch_scc1 {P2}
    s_sleep 2
    s_sub_u32 s39, s39, 1
    s_cmp_lg_u32 s39, 0
    s_cbranch_scc1 {P1}
    """)
    a.label(P2)
    arrive(a, vb+2, vb+3, C_XF, wait=False)
    a.label(P3)
    wait_cnt(a, vb+2, vb, C_XF, 1)
    ST.stamp('flags ok')
    a.e(f"""
    s_load_dwordx2 s[48:49], s[0:1], 88
    s_waitcnt lgkmcnt(0)
    """)
    mk_srd(a, 24, 48, 49, 2048*576*2)
    def do_block(blk_sgpr):
        D = vb + 4
        a.e(f"""
        s_mul_i32 s{S_T0}, s{S_J}, 9
        s_add_u32 s{S_T0}, s{S_T0}, s{blk_sgpr}        ; bi
        s_lshl_b32 s{S_T1}, s{S_RB}, 3
        s_mul_i32 s{S_T1}, s{S_T1}, {72*1024}
        s_lshl_b32 s{S_T2}, s{S_T0}, 10
        s_add_u32 s{S_T1}, s{S_T1}, s{S_T2}
        s_add_u32 s{S_T1}, s{S_T1}, {WS_PART}
        v_lshlrev_b32 v{vb}, 4, v{L}
        """)
        for js in range(8):
            a.e(f"buffer_load_dwordx4 {vr(D+4*js,4)}, v{vb}, s[20:23], s{S_T1} offen sc1")
            if js < 7: a.e(f"s_add_u32 s{S_T1}, s{S_T1}, {72*1024}")
        a.e(f"""
        s_mul_hi_u32 s40, s{S_T0}, {(2**32+17)//18}      ; wsrc
        s_mul_i32 s41, s40, 18
        s_sub_u32 s41, s{S_T0}, s41                      ; pair
        s_lshl_b32 s42, s{S_RB}, 6
        s_cmp_ge_u32 s41, 16
        s_cselect_b32 s43, 1, 0
        """)
        LX = a.newlabel("RX"); LD = a.newlabel("RD")
        a.e(f"""
        s_cbranch_scc1 {LX}
        s_lshr_b32 s44, s41, 1               ; t*2+rt
        s_and_b32 s45, s44, 1                ; rt
        s_lshr_b32 s44, s44, 1               ; t
        s_lshl_b32 s45, s45, 5
        s_add_u32 s42, s42, s45
        s_mul_i32 s42, s42, 1152
        s_lshl_b32 s45, s40, 8
        s_add_u32 s42, s42, s45
        s_lshl_b32 s45, s44, 6
        s_add_u32 s42, s42, s45
        s_and_b32 s45, s41, 1
        s_lshl_b32 s45, s45, 5
        s_add_u32 s42, s42, s45
        v_and_b32 v{vb+1}, 31, v{L}
        v_mul_u32_u24 v{vb+1}, 1152, v{vb+1}
        v_lshrrev_b32 v{vb+2}, 5, v{L}
        v_lshl_add_u32 v{vb+1}, v{vb+2}, 4, v{vb+1}
        s_branch {LD}
        """)
        a.label(LX)
        a.e(f"""
        s_sub_u32 s45, s41, 16               ; rt
        s_lshl_b32 s45, s45, 5
        s_add_u32 s42, s42, s45
        s_mul_i32 s42, s42, 1152
        s_lshl_b32 s45, s40, 5
        s_add_u32 s42, s42, s45
        s_add_u32 s42, s42, 1024
        v_and_b32 v{vb+1}, 15, v{L}
        v_mul_u32_u24 v{vb+1}, 1152, v{vb+1}
        v_lshrrev_b32 v{vb+2}, 4, v{L}
        v_lshl_add_u32 v{vb+1}, v{vb+2}, 3, v{vb+1}
        """)
        a.label(LD)
        A = D + 32
        T = A + 8
        for js in range(8):
            a.e(f"s_waitcnt vmcnt({7-js})")
            for d in range(4):
                src = D + 4*js + d
                if js == 0:
                    a.e(f"v_lshlrev_b32 v{A+2*d}, 16, v{src}\nv_and_b32 v{A+2*d+1}, 0xffff0000, v{src}")
                else:
                    a.e(f"v_lshlrev_b32 v{T+2*d}, 16, v{src}\nv_and_b32 v{T+2*d+1}, 0xffff0000, v{src}")
            if js:
                for d in range(4):
                    a.e(f"v_pk_add_f32 {vr(A+2*d,2)}, {vr(A+2*d,2)}, {vr(T+2*d,2)}")
        for d in range(4):
            a.e(f"v_cvt_pk_bf16_f32 v{T+d}, v{A+2*d}, v{A+2*d+1}")
        LX2 = a.newlabel("RX"); LD2 = a.newlabel("RD")
        a.e(f"""
        s_cmp_eq_u32 s43, 1
        s_cbranch_scc1 {LX2}
        s_nop 0
        v_permlane32_swap_b32 v{T}, v{T+2}
        v_permlane32_swap_b32 v{T+1}, v{T+3}
        s_nop 1
        buffer_store_dwordx4 {vr(T,4)}, v{vb+1}, s[24:27], s42 offen
        s_branch {LD2}
        """)
        a.label(LX2)
        a.e(f"""
        s_add_u32 s45, s42, {16*1152}
        buffer_store_dwordx2 {vr(T,2)}, v{vb+1}, s[24:27], s42 offen
        buffer_store_dwordx2 {vr(T+2,2)}, v{vb+1}, s[24:27], s45 offen
        """)
        a.label(LD2)
    a.e(f"s_mov_b32 s46, s{wave_expr_sgpr}")
    do_block(46)
    LE = a.newlabel("RE")
    a.e(f"s_cmp_lg_u32 s{wave_expr_sgpr}, 4\ns_cbranch_scc1 {LE}\ns_mov_b32 s46, 8")
    do_block(46)
    a.label(LE)

def gen_mlp(a, ST):
    L = V_LANE
    a.e(f"""
    s_load_dwordx2 s[48:49], s[0:1], 32      ; wo
    s_load_dwordx4 s[52:55], s[0:1], 48      ; w1, b1
    s_load_dwordx4 s[56:59], s[0:1], 64      ; w2, b2
    v_mov_b32 v{V_CNT}, {CNT}
    v_mov_b32 v{V_ONE}, 1
    """)
    if PRIO_MLP: a.e(f"s_setprio {PRIO_MLP}")
    a.e(f"""
    v_lshrrev_b32 v16, 4, v{L}               ; l>>4
    v_and_b32 v17, 15, v{L}                  ; i
    v_lshlrev_b32 v18, 2, v16
    v_xor_b32 v18, v17, v18
    v_lshlrev_b32 v18, 4, v18
    s_lshl_b32 s{S_T1}, s{S_W}, 8
    v_add_u32 v18, s{S_T1}, v18              ; swz + 256w
    v_mul_u32_u24 v19, 9216, v16
    v_add_u32 v{V_OM}, v19, v18
    v_mul_u32_u24 v19, 1152, v16
    v_add_u32 v{V_OM2}, v19, v18
    v_mov_b32 v{V_OMW}, v{V_OM2}
    v_mov_b32 v{V_OOB}, 0x80000000
    v_cmp_gt_u32 vcc, 2, v16
    v_lshrrev_b32 v20, 1, v{L}               ; row 0..31
    v_and_b32 v21, 1, v{L}
    v_cndmask_b32 v{V_OMWH}, v{V_OOB}, v{V_OM2}, vcc
    v_lshlrev_b32 v21, 4, v21
    s_lshl_b32 s{S_T1}, s{S_W}, 5
    s_add_u32 s{S_T1}, s{S_T1}, 1024
    v_add_u32 v21, s{S_T1}, v21              ; 1024 + 32w + 16(l&1)
    v_mul_u32_u24 v22, 9216, v20
    v_add_u32 v{V_OX}, v22, v21
    v_mul_u32_u24 v22, 1152, v20
    v_add_u32 v{V_OX2}, v22, v21
    s_waitcnt lgkmcnt(0)
    s_mul_i32 s{S_T0}, s{S_J}, 1152
    s_add_u32 s52, s52, s{S_T0}
    s_addc_u32 s53, s53, 0
    s_sub_u32 s{S_T1}, {576*9216}, s{S_T0}
    """)
    mk_srd(a, 8, 52, 53, f"s{S_T1}")
    a.e(f"""
    s_mul_i32 s{S_M0B}, s{S_W}, {RINGW}
    s_add_u32 s{S_M0B}, s{S_M0B}, {RING}
    s_mov_b32 s4, s8
    s_mov_b32 s5, s9
    s_mov_b32 s6, s10
    s_mov_b32 s7, s11
    s_mov_b32 s{S_OFF}, 0
    s_mov_b32 s{S_STEP}, {4*9216}
    """)
    a.e(f"""
    s_mul_i32 s{S_T0}, s{S_J}, {576*1152}
    s_add_u32 s56, s56, s{S_T0}
    s_addc_u32 s57, s57, 0
    """)
    mk_srd(a, 12, 56, 57, 576*1152)
    a.e(f"""
    s_mul_i32 s{S_T0}, s{S_J}, {72*1152}
    s_add_u32 s48, s48, s{S_T0}
    s_addc_u32 s49, s49, 0
    """)
    mk_srd(a, 16, 48, 49, 72*1152)
    mk_srd(a, 20, 62, 63, 0x10000000)
    a.e(f"""
    v_and_b32 v22, 31, v{L}
    v_lshlrev_b32 v22, 1, v22
    v_cmp_gt_u32 vcc, 32, v{L}
    v_and_b32 v23, 15, v{L}
    v_lshlrev_b32 v23, 1, v23
    v_cndmask_b32 v22, v{V_OOB}, v22, vcc
    v_cmp_gt_u32 vcc, 16, v{L}
    s_mul_i32 s{S_T0}, s{S_J}, 1152
    s_lshl_b32 s{S_T1}, s{S_W}, 8
    v_cndmask_b32 v23, v{V_OOB}, v23, vcc
    s_add_u32 s{S_T0}, s{S_T0}, s{S_T1}       ; (576j + 128w)*2
    """)
    mk_srd(a, 24, 54, 55, 4608*2)
    for t in range(4):
        a.e(f"buffer_load_ushort v{V_BI+t}, v22, s[24:27], s{S_T0} offen offset:{64*t}")
    a.e(f"""
    s_mul_i32 s{S_T0}, s{S_J}, 1152
    s_lshl_b32 s{S_T2}, s{S_W}, 5
    s_add_u32 s{S_T0}, s{S_T0}, s{S_T2}
    s_add_u32 s{S_T0}, s{S_T0}, 1024
    buffer_load_ushort v{V_BI+4}, v23, s[24:27], s{S_T0} offen
    s_cmp_eq_u32 s{S_J}, 0
    s_cselect_b32 s{S_T3}, {576*2}, 0
    """)
    mk_srd(a, 24, 58, 59, f"s{S_T3}")
    for t in range(4):
        a.e(f"buffer_load_ushort v{V_BI+5+t}, v22, s[24:27], s{S_T1} offen offset:{64*t}")
    a.e(f"""
    s_add_u32 s{S_T2}, s{S_T2}, 1024
    buffer_load_ushort v{V_BI+9}, v23, s[24:27], s{S_T2} offen
    """)
    for sl in range(3):
        a.e(f"""
        v_add_u32 v22, {32*sl}, v20
        v_mul_u32_u24 v23, 2731, v22
        v_lshrrev_b32 v23, 16, v23
        v_mul_u32_u24 v24, 24, v23
        v_sub_u32 v24, v22, v24
        v_mul_u32_u24 v23, 18, v23
        v_add_u32 v23, v23, v24
        v_mul_u32_u24 v23, 1152, v23
        v_add_u32 v23, v23, v21
        v_cmp_gt_u32 vcc, 18, v24
        s_nop 1
        v_cndmask_b32 v{V_OXW+sl}, v{V_OOB}, v23, vcc
        """)
    ST.stamp('mlp setup')
    X = 112
    a.e(f"""
    v_lshrrev_b32 v16, 4, v{L}               ; rr
    v_and_b32 v17, 15, v{L}                  ; i
    v_cmp_gt_u32 s[40:41], 8, v17
    s_lshl_b32 s{S_T0}, s{S_W}, 4
    v_add_u32 v18, s{S_T0}, v16              ; 16w + rr
    v_lshlrev_b32 v76, 3, v18
    v_add_u32 v76, {STAT}, v76
    v_mul_u32_u24 v18, 1152, v18
    v_lshl_add_u32 v72, v17, 4, v18
    s_mov_b32 s42, {hexf(1.0/576)}
    """)
    for q in range(4):
        for p in range(5):
            a.e(f"ds_read_b128 {vr(X+(q*5+p)*4,4)}, v72 offset:{XH + q*4608 + p*256}")
        if q == 1: a.e("s_waitcnt lgkmcnt(0)")
    wait_cnt(a, V_CNT, V_T, C_STAT, 4)
    ST.stamp('stats ok')
    for q in range(4):
        a.e(f"ds_read_b64 {vr(56+2*q,2)}, v76 offset:{32*q}")
    a.e("s_waitcnt lgkmcnt(0)")
    for q in range(4):
        S2 = 56 + 2*q
        a.e(f"v_mul_f32 v{S2}, s42, v{S2}")
    for q in range(4):
        S2 = 56 + 2*q
        a.e(f"v_mul_f32 v{64+q}, v{S2}, v{S2}")
    for q in range(4):
        S2 = 56 + 2*q
        a.e(f"v_fma_f32 v{S2+1}, v{S2+1}, s42, -v{64+q}")
    for q in range(4):
        S2 = 56 + 2*q
        a.e(f"v_max_f32 v{S2+1}, 0, v{S2+1}")
    for q in range(4):
        S2 = 56 + 2*q
        a.e(f"v_add_f32 v{S2+1}, {hexf(1e-5)}, v{S2+1}")
    for q in range(4):
        S2 = 56 + 2*q
        a.e(f"v_rsq_f32 v{S2+1}, v{S2+1}")
    a.e("s_nop 0")
    for q in range(4):
        S2 = 56 + 2*q
        a.e(f"v_mul_f32 v{S2}, v{S2}, v{S2+1}")
    for q in range(4):
        S2 = 56 + 2*q
        a.e(f"v_sub_f32 v{S2}, 0, v{S2}")
    F0 = 16
    for q in range(4):
        xq = X + q*20; S2 = 56 + 2*q
        for i in range(20):
            a.e(f"v_lshlrev_b32 v{F0+2*i}, 16, v{xq+i}\nv_and_b32 v{F0+2*i+1}, 0xffff0000, v{xq+i}")
        for i in range(40):
            a.e(f"v_fma_f32 v{F0+i}, v{F0+i}, v{S2+1}, v{S2}")
        for i in range(20):
            a.e(f"v_cvt_pk_bf16_f32 v{xq+i}, v{F0+2*i}, v{F0+2*i+1}")
    ST.stamp('LN regs')
    wait_cnt(a, V_CNT, V_T, C_P, 4)
    ST.stamp('C_P ok')
    for ph in range(2):
        for s_ in dma_regular(0, ph, V_OM, V_OX): a.e(s_)
    ST.stamp('slab0 iss')
    for q in range(4):
        xq = X + q * 20
        for p in range(4):
            a.e(f"ds_write_b128 v72, {vr(xq+4*p,4)} offset:{XH + q*4608 + p*256}")
        a.e(f"s_mov_b64 exec, s[40:41]\nds_write_b128 v72, {vr(xq+16,4)} offset:{XH + q*4608 + 1024}\ns_mov_b64 exec, -1")
    arrive(a, V_CNT, V_ONE, C_Y)
    ST.stamp('Y written')
    for ph in range(2):
        for s_ in dma_regular(1, ph, V_OM, V_OX): a.e(s_)
    ST.stamp('LN done')

    def init_acc(bi):
        for t in range(4):
            a.e(f"v_mov_b32 v{SETA[0]+4*t}, v{bi+t}")
            for i in range(1, 4): a.e(f"v_mov_b32 v{SETA[0]+4*t+i}, 0")
        a.e(f"v_mov_b32 v{AX}, v{bi+4}")
        for i in range(1, 4): a.e(f"v_mov_b32 v{AX+i}, 0")
        a.e(f"""
        v_mov_b32 v{V_T}, 0x3f80
        v_cmp_gt_u32 vcc, 32, v{L}
        v_mov_b32 v{SETB[0]+1}, 0
        v_mov_b32 v{SETB[0]+2}, 0
        v_cndmask_b32 v{SETB[0]}, 0, v{V_T}, vcc
        v_mov_b32 v{SETB[0]+3}, 0
        v_cmp_gt_u32 vcc, 16, v{L}
        v_mov_b32 v{BX+1}, 0
        v_mov_b32 v{BX+2}, 0
        v_cndmask_b32 v{BX}, 0, v{V_T}, vcc
        v_mov_b32 v{BX+3}, 0
        s_nop 1
        """)
        for t in range(4):
            for rt in range(2):
                a.e(f"v_mfma_f32_32x32x16_bf16 {vr(acc(t,rt),16)}, {vr(SETA[0]+4*t,4)}, {vr(SETB[0],4)}, 0")
        for rt in range(2):
            for rh in range(2):
                a.e(f"v_mfma_f32_16x16x32_bf16 {vr(accx(rt,rh),4)}, {vr(AX,4)}, {vr(BX,4)}, 0")

    def setup_a(perm):
        a.e(f"""
        v_lshrrev_b32 v16, 5, v{L}               ; hf
        v_bfe_u32 v17, v{L}, 4, 1                ; chalf
        v_bfe_u32 v18, v{L}, 2, 2                ; r
        v_and_b32 v19, 3, v{L}                   ; c
        v_lshl_add_u32 v20, v16, {2 if perm else 3}, v18
        v_lshlrev_b32 v20, 8, v20
        v_lshl_add_u32 v20, v17, 5, v20
        v_lshl_add_u32 v20, v19, 3, v20
        v_add_u32 v20, s{S_M0B}, v20
        """)
        for t in range(4):
            a.e(f"v_xor_b32 v21, {t}, v18\nv_lshl_add_u32 v{V_A+t}, v21, 6, v20")
        if perm:
            a.e(f"v_lshlrev_b32 v21, 4, v16\nv_lshl_add_u32 v21, v17, 2, v21\nv_add_u32 v21, v21, v18")
        else:
            a.e(f"v_lshrrev_b32 v21, 4, v{L}\nv_lshl_add_u32 v21, v21, 3, v18")
        a.e(f"""
        v_lshlrev_b32 v21, 5, v21
        v_lshl_add_u32 v21, v19, 3, v21
        v_add_u32 v{V_AX}, s{S_M0B}, v21
        """)
    def setup_b_x():
        a.e(f"""
        v_and_b32 v16, 31, v{L}
        v_mul_u32_u24 v17, 1152, v16
        v_bfe_u32 v18, v16, 1, 3
        v_lshrrev_b32 v19, 5, v{L}
        """)
        for b in range(4):
            a.e(f"v_add_u32 v20, {2*b}, v19\nv_xor_b32 v20, v20, v18\nv_lshl_add_u32 v{V_B+b}, v20, 4, v17")
        a.e(f"""
        v_and_b32 v16, 15, v{L}
        v_mul_u32_u24 v17, 1152, v16
        v_bfe_u32 v18, v16, 1, 3
        v_lshrrev_b32 v19, 4, v{L}
        """)
        for e in range(2):
            a.e(f"v_add_u32 v20, {4*e}, v19\nv_xor_b32 v20, v20, v18\nv_lshl_add_u32 v{V_BX+e}, v20, 4, v17")
    def setup_b_h(base):
        a.e(f"""
        v_lshlrev_b32 v{V_B}, 4, v{L}
        v_add_u32 v{V_B}, {base}, v{V_B}
        v_lshrrev_b32 v16, 5, v{L}
        v_mul_u32_u24 v16, {KS}, v16
        v_bfe_u32 v17, v{L}, 4, 1
        v_lshl_add_u32 v16, v17, 9, v16
        v_and_b32 v17, 15, v{L}
        v_lshl_add_u32 v16, v17, 4, v16
        v_add_u32 v{V_BX}, {base}, v16
        """)
    setup_a(False)
    setup_b_x()
    a.e("s_waitcnt vmcnt(18)")
    init_acc(V_BI)
    wait_cnt(a, V_CNT, V_T, C_Y, 4)
    a.e("s_waitcnt vmcnt(9)")
    ST.stamp('G1 start')

    def run_gemm(G, vom, vox, tag, next_dma0, next_dma1, switch, hook=None):
        for s in G.reads_main(0, 0, 0, 0): a.e(s)
        a.e(f"s_mov_b32 s{S_IT}, {5 if NO_MLP else 8}")
        if NO_MLP: a.e(f"s_branch {tag}_SKIP")
        a.raw(".p2align 6")
        a.label(f"{tag}_LOOP")
        for d in range(2):
            G.dstep(d, 2*d, dma_regular(d, 0, vom, vox), dma_regular(d, 1, vom, vox), 9, 9)
        if hook: hook()
        G.advance()
        a.e(f"""
        s_sub_u32 s{S_IT}, s{S_IT}, 1
        s_cmp_lg_u32 s{S_IT}, 0
        s_cbranch_scc1 {tag}_LOOP
        """)
        if NO_MLP:
            a.label(f"{tag}_SKIP")
            if hook: hook()
        switch()
        G.dstep(0, 0, next_dma0(0), next_dma1(0), 9, 9)
        G.dstep(1, 2, next_dma0(1), next_dma1(1), 9, 9, next_reads=False)

    G1 = GemmGen(a, 'x')
    def sw1():
        a.e(f"""
        s_mov_b32 s4, s12
        s_mov_b32 s5, s13
        s_mov_b32 s6, s14
        s_mov_b32 s7, s15
        s_mov_b32 s{S_OFF}, 0
        s_mov_b32 s{S_STEP}, {4*1152}
        """)
    run_gemm(G1, V_OM, V_OX, "G1", lambda b: dma_regular(b, 0, V_OM2, V_OX2), lambda b: dma_regular(b, 1, V_OM2, V_OX2), sw1)
    arrive(a, V_CNT, V_ONE, C_G1)
    ST.stamp('G1 end')
    a.e(f"""
    s_mov_b32 s44, {hexf(GC1)}
    s_mov_b32 s45, {hexf(GC1)}
    v_mov_b32 v30, {hexf(GC2)}
    v_mov_b32 v31, {hexf(GC2)}
    v_and_b32 v16, 31, v{L}
    v_lshlrev_b32 v16, 2, v16
    v_add_u32 v16, {GBUF}, v16
    v_and_b32 v17, 15, v{L}
    v_lshlrev_b32 v17, 2, v17
    v_add_u32 v17, {GBUF}, v17
    ds_read_b32 v{V_G}, v16
    ds_read_b32 v{V_G+1}, v16 offset:128
    ds_read_b32 v{V_G+2}, v17
    ds_read_b32 v{V_G+3}, v17 offset:64
    ds_read_b32 v{V_G+4}, v17 offset:128
    ds_read_b32 v{V_G+5}, v17 offset:192
    s_nop 7
    """)
    def gelu_group(base, npairs, dst):
        for p0 in range(0, npairs, 2):
            ps = [p0, p0+1]
            for n, p in enumerate(ps):
                a.e(f"v_pk_mul_f32 {vr(16+4*n,2)}, {vr(base+2*p,2)}, {vr(base+2*p,2)}")
            for n, p in enumerate(ps):
                a.e(f"v_pk_fma_f32 {vr(16+4*n,2)}, {vr(16+4*n,2)}, s[44:45], v[30:31]")
            for n, p in enumerate(ps):
                a.e(f"v_pk_mul_f32 {vr(16+4*n,2)}, {vr(16+4*n,2)}, {vr(base+2*p,2)}")
            for n, p in enumerate(ps):
                a.e(f"v_exp_f32 v{16+4*n}, v{16+4*n}\nv_exp_f32 v{17+4*n}, v{17+4*n}")
            for n, p in enumerate(ps):
                a.e(f"v_pk_add_f32 {vr(16+4*n,2)}, {vr(16+4*n,2)}, 1.0 op_sel_hi:[1,0]")
            for n, p in enumerate(ps):
                a.e(f"v_rcp_f32 v{16+4*n}, v{16+4*n}\nv_rcp_f32 v{17+4*n}, v{17+4*n}")
            for n, p in enumerate(ps):
                a.e(f"v_pk_mul_f32 {vr(16+4*n,2)}, {vr(16+4*n,2)}, {vr(base+2*p,2)}")
            for n, p in enumerate(ps):
                a.e(f"v_cvt_pk_bf16_f32 v{dst+p}, v{16+4*n}, v{17+4*n}")
    a.e(f"""
    v_lshlrev_b32 v24, 4, v{L}
    s_mul_i32 s{S_T0}, s{S_W}, {8*KS}
    v_add_u32 v24, s{S_T0}, v24                  ; vH
    v_bfe_u32 v25, v{L}, 4, 1
    v_lshlrev_b32 v25, 9, v25
    v_and_b32 v26, 15, v{L}
    v_lshl_add_u32 v25, v26, 4, v25
    v_lshrrev_b32 v26, 5, v{L}
    v_lshl_add_u32 v25, v26, 3, v25
    s_add_u32 s{S_T0}, s{S_W}, 32
    s_mul_i32 s{S_T0}, s{S_T0}, {KS}
    v_add_u32 v25, s{S_T0}, v25                  ; vHx
    """)
    first = True
    for t in range(4):
        for rt in range(2):
            gelu_group(acc(t, rt), 8, acc(t, rt))
            if first:
                wait_cnt(a, V_CNT, 26, C_G1, 4)
                first = False
            for h in range(2):
                a.e(f"ds_write_b128 v24, {vr(acc(t,rt)+4*h,4)} offset:{XH + (2*t+h)*KS + rt*1024}")
    for rt in range(2):
        for rh in range(2):
            gelu_group(accx(rt, rh), 2, accx(rt, rh))
            a.e(f"ds_write_b64 v25, {vr(accx(rt,rh),2)} offset:{XH + rt*1024 + rh*256}")
    arrive(a, V_CNT, V_ONE, C_H)
    ST.stamp('GELU done')
    for i in range(6):
        a.e(f"v_sub_f32 v{V_G+i}, 1.0, v{V_G+i}")
    init_acc(V_BI + 5)
    setup_a(True)
    setup_b_h(XH)
    wait_cnt(a, V_CNT, V_T, C_H, 4)
    ST.stamp('G2 start')
    G2 = GemmGen(a, 'h')
    def hook2():
        L1 = a.newlabel("G2H")
        a.e(f"s_cmp_lg_u32 s{S_IT}, 5\ns_cbranch_scc1 {L1}")
        arrive(a, V_CNT, V_ONE, C_G2, wait=False)
        a.label(L1)
    run_gemm(G2, V_OM2, V_OX2, "G2", lambda b: dma_wo(b, b, 0), lambda b: dma_wo(b, b, 1), lambda: None, hook=hook2)
    ST.stamp('G2 end')
    a.e("s_nop 15")
    for t in range(4):
        for rt in range(2):
            for i in range(0, 16, 2):
                a.e(f"v_pk_mul_f32 {vr(acc(t,rt)+i,2)}, {vr(acc(t,rt)+i,2)}, {vr(V_G,2)} op_sel:[0,{rt}] op_sel_hi:[1,{rt}]")
    for rt in range(2):
        for rh in range(2):
            for i in range(0, 4, 2):
                a.e(f"v_pk_mul_f32 {vr(accx(rt,rh)+i,2)}, {vr(accx(rt,rh)+i,2)}, {vr(V_G+2+2*rt,2)} op_sel:[0,{rh}] op_sel_hi:[1,{rh}]")
    setup_b_h(OPB)
    wait_cnt(a, V_CNT, V_T, C_O, 4)
    ST.stamp('O ready')
    a.e(f"ds_read_b32 v{V_T}, v{V_CNT} offset:{C_TAG}")
    for s in G2.reads_main(0, 0, 0, 0): a.e(s)
    a.e(f"s_waitcnt lgkmcnt(0)\nv_readfirstlane_b32 s47, v{V_T}")
    G2.dstep(0, 0, dma_wo(2, 0, 0), dma_wo(2, 0, 1), 9, 9)
    G2.dstep(1, 2, [], [], 9, 5)
    G2.dstep(0, 4, [], [], 0, None, next_reads=False)
    ST.stamp('wo done')
    a.e(f"""
    s_mul_i32 s{S_T0}, s3, 72
    s_mul_i32 s{S_T1}, s{S_W}, 18
    s_add_u32 s{S_T0}, s{S_T0}, s{S_T1}
    s_lshl_b32 s{S_T0}, s{S_T0}, 10
    s_add_u32 s{S_T0}, s{S_T0}, {WS_PART}
    v_lshlrev_b32 v{V_T}, 4, v{L}
    s_nop 7
    """)
    for pr in range(18):
        src = ACC + 8*pr; dst = 16 + 4*(pr % 8)
        for d in range(4):
            a.e(f"v_cvt_pk_bf16_f32 v{dst+d}, v{src+2*d}, v{src+2*d+1}")
        if pr and pr % 4 == 0: a.e(f"s_add_u32 s{S_T0}, s{S_T0}, 4096")
        if pr >= 8: a.e("s_nop 0")
        a.e(f"buffer_store_dwordx4 {vr(dst,4)}, v{V_T}, s[20:23], s{S_T0} offen offset:{(pr%4)*1024} sc1")
    a.e("s_waitcnt vmcnt(0)")
    a.e(f"""
    s_mov_b64 exec, 1
    ds_add_rtn_u32 v16, v{V_CNT}, v{V_ONE} offset:{C_S}
    s_waitcnt lgkmcnt(0)
    v_readfirstlane_b32 s{S_T0}, v16
    s_cmp_lg_u32 s{S_T0}, 3
    s_cbranch_scc1 M_NOFLAG
    s_lshl_b32 s{S_T0}, s{S_RB}, 7
    s_lshl_b32 s{S_T1}, s{S_J}, 2
    s_add_u32 s{S_T0}, s{S_T0}, s{S_T1}
    s_add_u32 s{S_T0}, s{S_T0}, {WS_XF}
    v_mov_b32 v16, s47
    v_mov_b32 v17, 0
    buffer_store_dword v16, v17, s[20:23], s{S_T0} offen sc1
    """)
    a.label("M_NOFLAG")
    a.e("s_mov_b64 exec, -1")
    ST.stamp('published')
    gen_reduce(a, ST, S_W)

KVB = [16, 32, 48, 64]
QA = lambda h: 80 + 6*h
QB = lambda h: 84 + 6*h
P = 104
S = [112, 128]
O = lambda h: 144 + 16*h
AV_16, AV_4, A_CNT, A_ONE, A_G = 2, 3, 11, 12, 212
NRM = 208
S_RT, S_KH, S_KV, S_LP, S_PASS = 31, 32, 33, 34, 46
XQ = OPB
KVD = 3

def gen_att(a, ST):
    L = V_LANE
    PA = 144
    a.e(f"""
    v_lshlrev_b32 v{AV_16}, 4, v{L}
    v_lshlrev_b32 v{AV_4}, 2, v{L}
    v_mov_b32 v{A_CNT}, {CNT}
    v_mov_b32 v{A_ONE}, 1
    v_lshrrev_b32 v15, 5, v{L}
    v_cmp_eq_u32 s[40:41], 0, v15
    s_mov_b32 s44, {hexf(CSCALE)}
    s_mov_b32 s45, {hexf(CSCALE)}
    """)
    mk_srd(a, 20, 62, 63, 0x10000000)
    for i in range(0, 12, 2):
        a.e(f"v_pk_mul_f32 {vr(PA+i,2)}, {vr(PA+i,2)}, s[44:45]")
        a.e(f"v_pk_mul_f32 {vr(PA+16+i,2)}, {vr(PA+16+i,2)}, s[44:45]")
    for d in range(4):
        a.e(f"v_cvt_pk_bf16_f32 v{QA(0)+d}, v{PA+2*d}, v{PA+2*d+1}")
    a.e(f"v_cvt_pk_bf16_f32 v{QB(0)}, v{PA+8}, v{PA+9}")
    W = 16
    for d in range(6):
        a.e(f"v_cvt_pk_bf16_f32 v{W+d}, v{PA+16+2*d}, v{PA+16+2*d+1}")
    a.e(f"""
    v_mov_b32 v{QA(1)}, v{W+1}
    v_mov_b32 v{QA(1)+2}, v{W+3}
    v_mov_b32 v{QB(1)}, v{W+5}
    v_mov_b32 v24, v{W+2}
    s_nop 0
    v_permlane32_swap_b32 v{W}, v{W+2}
    s_nop 1
    v_cndmask_b32 v{QA(1)+1}, v{W}, v{W+2}, s[40:41]
    v_permlane32_swap_b32 v24, v{W+4}
    s_nop 1
    v_cndmask_b32 v{QA(1)+3}, v24, v{W+4}, s[40:41]
    v_cndmask_b32 v{QB(0)}, 0, v{QB(0)}, s[40:41]
    v_cndmask_b32 v{QB(1)}, 0, v{QB(1)}, s[40:41]
    s_mul_i32 s{S_T0}, s{S_W}, 2560
    s_add_u32 s{S_T0}, s{S_T0}, {XQ}
    v_add_u32 v5, s{S_T0}, v{AV_16}
    v_add_u32 v6, s{S_T0}, v{AV_4}
    ds_write_b128 v5, {vr(QA(0),4)}
    ds_write_b32 v6, v{QB(0)} offset:1024
    ds_write_b128 v5, {vr(QA(1),4)} offset:1280
    ds_write_b32 v6, v{QB(1)} offset:2304
    s_xor_b32 s{S_T1}, s{S_W}, 2
    s_mul_i32 s{S_T1}, s{S_T1}, 2560
    s_add_u32 s{S_T1}, s{S_T1}, {XQ}
    v_add_u32 v5, s{S_T1}, v{AV_16}
    v_add_u32 v6, s{S_T1}, v{AV_4}
    """)
    arrive(a, A_CNT, A_ONE, C_ST)
    for h in range(2):
        norm_sum(a, NRM+h, [QA(h), QA(h)+1, QA(h)+2, QA(h)+3, QB(h)], 4)
    wait_cnt(a, A_CNT, 13, C_ST, 4)
    a.e(f"""
    ds_read_b128 {vr(QA(2),4)}, v5
    ds_read_b32 v{QB(2)}, v6 offset:1024
    ds_read_b128 {vr(QA(3),4)}, v5 offset:1280
    ds_read_b32 v{QB(3)}, v6 offset:2304
    v_mov_b32 v14, 0x00003f80
    """)
    for b in range(4):
        a.e(f"v_cndmask_b32 v{KVB[b]+13}, 0, v14, s[40:41]")
    a.e("s_waitcnt lgkmcnt(0)")
    for h in range(2, 4):
        norm_sum(a, NRM+h, [QA(h), QA(h)+1, QA(h)+2, QA(h)+3, QB(h)], 4)
    for h in range(4):
        a.e(f"v_sqrt_f32 v{NRM+h}, v{NRM+h}")
    ST.stamp('Q ready')
    a.e(f"s_cmp_lg_u32 s{S_W}, 3\ns_cbranch_scc1 A_KVW\ns_mov_b32 s39, 0x100000")
    a.label("A_KVP")
    a.e(f"""
    global_load_dword v13, v{AV_4}, s[60:61] sc1
    s_waitcnt vmcnt(0)
    v_cmp_eq_u32 vcc, 0, v13
    s_nop 1
    s_cmp_eq_u64 vcc, 0
    s_cbranch_scc1 A_KVD
    s_sleep 2
    s_sub_u32 s39, s39, 1
    s_cmp_lg_u32 s39, 0
    s_cbranch_scc1 A_KVP
    """)
    a.label("A_KVD")
    a.e(f"""
    s_mov_b64 exec, 1
    ds_write_b32 v{A_CNT}, v13 offset:{C_TAG}
    ds_add_u32 v{A_CNT}, v{A_ONE} offset:{C_KV}
    s_mov_b64 exec, -1
    """)
    a.label("A_KVW")
    wait_cnt(a, A_CNT, 13, C_KV, 1)
    ST.stamp('KV ok')
    a.e(f"""
    ds_read_b32 v4, v{A_CNT} offset:{C_TAG}
    s_mov_b32 s{S_T1}, {WS_KMAX}
    buffer_load_dword v13, v{AV_4}, s[20:23], s{S_T1} offen sc1
    s_lshl_b32 s{S_KV}, s{S_KH}, 17
    s_add_u32 s{S_KV}, s{S_KV}, {WS_KV}
    """)
    def kv_load(buf):
        b = KVB[buf]
        a.e(f"""
        buffer_load_dwordx4 {vr(b,4)}, v{AV_16}, s[20:23], s{S_KV} offen sc1
        buffer_load_dword v{b+12}, v{AV_4}, s[20:23], s{S_KV} offen offset:3072 sc1
        buffer_load_dwordx4 {vr(b+4,4)}, v{AV_16}, s[20:23], s{S_KV} offen offset:1024 sc1
        buffer_load_dwordx4 {vr(b+8,4)}, v{AV_16}, s[20:23], s{S_KV} offen offset:2048 sc1
        s_add_u32 s{S_KV}, s{S_KV}, 4096
        """)
    for b in range(KVD): kv_load(b)
    a.e(f"""
    v_and_b32 v8, 31, v{L}
    v_lshlrev_b32 v8, 2, v8
    s_lshl_b32 s{S_T0}, s{S_RT}, 7
    s_add_u32 s{S_T0}, s{S_T0}, {GBUF}
    v_add_u32 v{A_G+1}, s{S_T0}, v8
    s_waitcnt vmcnt({4*KVD}) lgkmcnt(0)
    v_readfirstlane_b32 s47, v4
    """)
    for pat in ["quad_perm:[1,0,3,2]", "quad_perm:[2,3,0,1]", "row_ror:4", "row_ror:8"]:
        a.e(f"v_max_f32_dpp v13, v13, v13 {pat} row_mask:0xf bank_mask:0xf\ns_nop 1")
    a.e(f"""
    ds_swizzle_b32 v14, v13 offset:{(16<<10)|0x1f}
    s_waitcnt lgkmcnt(0)
    v_max_f32 v13, v13, v14
    v_mov_b32 v14, v13
    s_nop 1
    v_permlane32_swap_b32 v13, v14
    s_nop 1
    v_max_f32 v13, v13, v14
    v_sqrt_f32 v13, v13
    s_nop 0
    v_mul_f32 v13, {hexf(1.0 + 2.0**-6)}, v13
    """)
    if FORCE_FB:
        a.e(f"v_add_f32 v13, 0x43000000, v13")
    def set_m(h, vm):
        a.e(f"""
        v_and_b32 v4, 0xffff0000, v{vm}
        v_sub_f32 v5, v{vm}, v4
        v_and_b32 v6, 0xffff0000, v5
        v_sub_f32 v5, v5, v6
        v_lshrrev_b32 v5, 16, v5
        v_lshrrev_b32 v4, 16, v4
        v_or_b32 v4, v4, v6
        v_cndmask_b32 v{QB(h)}, v4, v{QB(h)}, s[40:41]
        v_cndmask_b32 v{QB(h)+1}, 0, v5, s[40:41]
        """)
    for h in range(4):
        a.e(f"v_mul_f32 v7, v{NRM+h}, v13\nv_sub_f32 v7, 0, v7")
        set_m(h, 7)
    a.e(f"s_mov_b32 s{S_PASS}, 4")

    def qk_a(n_s, h, buf, c="0"):
        return f"v_mfma_f32_32x32x16_bf16 {vr(S[n_s],16)}, {vr(KVB[buf],4)}, {vr(QA(h),4)}, 0"
    def qk_b(n_s, h, buf):
        return f"v_mfma_f32_32x32x8_bf16 {vr(S[n_s],16)}, {vr(KVB[buf]+12,2)}, {vr(QB(h),2)}, {vr(S[n_s],16)}"
    def pv(h, t, buf):
        return f"v_mfma_f32_32x32x16_bf16 {vr(O(h),16)}, {vr(KVB[buf]+4+4*t,4)}, {vr(P+4*t,4)}, {vr(O(h),16)}"
    def ec(s, g):
        b = S[s] + 4*g
        for i in range(4): a.e(f"v_exp_f32 v{b+i}, v{b+i}")
        a.e(f"v_cvt_pk_bf16_f32 v{P+2*g}, v{b}, v{b+1}")
        a.e(f"v_cvt_pk_bf16_f32 v{P+2*g+1}, v{b+2}, v{b+3}")

    a.label("A_MAIN")
    for i in range(8): a.e(f"v_mov_b32 v{P+i}, 0")
    for i in range(4): a.e(f"v_mov_b32 v{KVB[3]+8+i}, 0")
    a.e("s_nop 1")
    for h in range(4):
        a.e(f"v_mfma_f32_32x32x16_bf16 {vr(O(h),16)}, {vr(P,4)}, {vr(P,4)}, 0")
    a.e(f"s_waitcnt vmcnt({4*(KVD-1)})")
    ST.stamp('loop start')
    a.e(f"s_setprio {PPAT[3] if len(set(PPAT)) > 1 else PPAT[0]}")
    a.e(qk_a(0, 0, 0)); a.e(qk_b(0, 0, 0))
    a.e(f"s_mov_b32 s{S_LP}, {1 if NO_ATT else 8}")
    a.e("s_nop 15")
    a.raw(".p2align 6")
    a.label("ATT_LOOP")
    for kb in range(4):
        for h in range(4):
            n = kb*4 + h
            cur, nxt = n % 2, (n + 1) % 2
            nh, nbuf = (h + 1) % 4, (kb if h < 3 else (kb + 1) % 4)
            ph, pbuf = (h - 1) % 4, (kb if h > 0 else (kb - 1) % 4)
            if h == 0 and len(set(PPAT)) > 1 and PPAT[kb] != PPAT[kb-1]: a.e(f"s_setprio {PPAT[kb]}")
            if h == 3: a.e(f"s_waitcnt vmcnt({4*(KVD-1)})")
            a.e(qk_a(nxt, nh, nbuf))
            ec(cur, 0)
            a.e(pv(ph, 1, pbuf))
            if h == 0: kv_load((kb + KVD) % 4)
            ec(cur, 1)
            a.e(qk_b(nxt, nh, nbuf))
            ec(cur, 2)
            a.e(pv(h, 0, kb))
            ec(cur, 3)
    a.e(f"""
    s_sub_u32 s{S_LP}, s{S_LP}, 1
    s_cmp_lg_u32 s{S_LP}, 0
    s_cbranch_scc1 ATT_LOOP
    """)
    a.e("s_nop 1")
    a.e(pv(3, 1, 3))
    a.e(f"ds_read_b32 v{A_G}, v{A_G+1}")
    a.e("s_waitcnt vmcnt(0)\ns_nop 15")
    a.e("s_setprio 0")
    ST.stamp('loop end')
    a.e(f"""
    v_min_f32 v4, v{O(0)+10}, v{O(1)+10}
    v_min_f32 v5, v{O(2)+10}, v{O(3)+10}
    v_min_f32 v4, v4, v5
    v_mov_b32 v5, {hexf(2.0**-90)}
    v_cmp_nge_f32 vcc, v4, v5
    s_nop 1
    s_and_b64 vcc, vcc, s[40:41]
    s_cmp_eq_u64 vcc, 0
    s_cbranch_scc1 A_CHKOK
    """)
    arrive(a, A_CNT, A_ONE, C_FB, wait=False)
    a.label("A_CHKOK")
    wait_cnt(a, A_CNT, 13, C_G2, 4)
    ST.stamp('G2 ok')
    a.e(f"""
    s_mul_i32 s{S_T0}, s{S_W}, 6144
    v_add_u32 v13, s{S_T0}, v{AV_16}
    s_xor_b32 s{S_T1}, s{S_W}, 2
    s_mul_i32 s{S_T1}, s{S_T1}, 6144
    v_add_u32 v14, s{S_T1}, v{AV_16}
    """)
    for n, h in enumerate([2, 3]):
        for qd in range(3):
            a.e(f"ds_write_b128 v13, {vr(O(h)+4*qd,4)} offset:{XH + n*3072 + qd*1024}")
    arrive(a, A_CNT, A_ONE, C_X)
    wait_cnt(a, A_CNT, 15, C_X, f"s{S_PASS}")
    a.e(f"""
    s_cmp_lg_u32 s{S_PASS}, 4
    s_cbranch_scc1 A_NOFB
    ds_read_b32 v15, v{A_CNT} offset:{C_FB}
    s_waitcnt lgkmcnt(0)
    v_readfirstlane_b32 s{S_T0}, v15
    s_cmp_eq_u32 s{S_T0}, 0
    s_cbranch_scc1 A_NOFB
    """)
    for h in range(4):
        a.e(f"v_mov_b32 v{NRM+h}, 0xff800000")
        a.e(f"v_cndmask_b32 v{QB(h)}, 0, v{QB(h)}, s[40:41]\nv_mov_b32 v{QB(h)+1}, 0")
    a.e(f"""
    s_lshl_b32 s{S_KV}, s{S_KH}, 17
    s_add_u32 s{S_KV}, s{S_KV}, {WS_KV}
    s_mov_b32 s{S_LP}, 32
    """)
    a.label("A_MAXL")
    kv_load(0)
    a.e("s_waitcnt vmcnt(0)")
    for h in range(4):
        a.e(qk_a(0, h, 0)); a.e(qk_b(0, h, 0))
        a.e("s_nop 15\ns_nop 7")
        for i in range(0, 16, 2):
            a.e(f"v_max3_f32 v{NRM+h}, v{S[0]+i}, v{S[0]+i+1}, v{NRM+h}")
    a.e(f"""
    s_sub_u32 s{S_LP}, s{S_LP}, 1
    s_cmp_lg_u32 s{S_LP}, 0
    s_cbranch_scc1 A_MAXL
    """)
    for h in range(4):
        a.e(f"""
        v_mov_b32 v4, v{NRM+h}
        s_nop 1
        v_permlane32_swap_b32 v{NRM+h}, v4
        s_nop 1
        v_max_f32 v{NRM+h}, v{NRM+h}, v4
        """)
    a.e(f"""
    s_mul_i32 s{S_T0}, s{S_W}, 6144
    v_add_u32 v13, s{S_T0}, v{AV_4}
    s_xor_b32 s{S_T1}, s{S_W}, 2
    s_mul_i32 s{S_T1}, s{S_T1}, 6144
    v_add_u32 v14, s{S_T1}, v{AV_4}
    """)
    for h in range(4):
        a.e(f"ds_write_b32 v13, v{NRM+h} offset:{XH + 256*h}")
    arrive(a, A_CNT, A_ONE, C_M)
    wait_cnt(a, A_CNT, 15, C_M, 4)
    for h in range(4):
        a.e(f"ds_read_b32 v{4+h if False else 96+0+0 if False else 217+h}, v14 offset:{XH + 256*((h+2)%4)}")
    a.e("s_waitcnt lgkmcnt(0)")
    for h in range(4):
        a.e(f"v_max_f32 v7, v{NRM+h}, v{217+h}\nv_sub_f32 v7, 0, v7")
        set_m(h, 7)
    arrive(a, A_CNT, A_ONE, C_M)
    wait_cnt(a, A_CNT, 15, C_M, 8)
    a.e(f"""
    s_lshl_b32 s{S_KV}, s{S_KH}, 17
    s_add_u32 s{S_KV}, s{S_KV}, {WS_KV}
    s_mov_b32 s{S_PASS}, 8
    """)
    for b in range(KVD): kv_load(b)
    a.e("s_branch A_MAIN")
    a.label("A_NOFB")
    a.e(f"""
    s_xor_b32 s{S_T1}, s{S_W}, 2
    s_mul_i32 s{S_T1}, s{S_T1}, 6144
    v_add_u32 v14, s{S_T1}, v{AV_16}
    """)
    for n in range(2):
        for qd in range(3):
            a.e(f"ds_read_b128 {vr(S[0]+ (n*12) + 4*qd,4)}, v14 offset:{XH + n*3072 + qd*1024}")
    a.e("s_waitcnt lgkmcnt(0)")
    for n in range(2):
        for i in range(12):
            a.e(f"v_add_f32 v{16+12*n+i}, v{O(n)+i}, v{S[0]+12*n+i}")
    a.e(f"""
    s_lshl_b32 s{S_T0}, s{S_RT}, 10
    s_add_u32 s{S_T0}, s{S_T0}, {OPB}
    v_add_u32 v13, s{S_T0}, v{AV_16}
    s_mul_i32 s{S_T1}, s{S_KH}, {3*KS}
    v_add_u32 v13, s{S_T1}, v13
    """)
    for n in range(2):
        b = 16 + 12*n
        a.e(f"""
        v_mov_b32 v4, v{b+10}
        v_mov_b32 v5, v{b+10}
        s_nop 1
        v_permlane32_swap_b32 v4, v5
        s_nop 1
        v_rcp_f32 v5, v4
        s_nop 0
        v_mul_f32 v5, v5, v{A_G}
        """)
        for i in range(10):
            a.e(f"v_mul_f32 v{b+i}, v5, v{b+i}")
        a.e(f"""
        v_cvt_pk_bf16_f32 v40, v{b}, v{b+1}
        v_cvt_pk_bf16_f32 v41, v{b+2}, v{b+3}
        v_cvt_pk_bf16_f32 v42, v{b+4}, v{b+5}
        v_cvt_pk_bf16_f32 v43, v{b+6}, v{b+7}
        v_cvt_pk_bf16_f32 v44, v{b+8}, v{b+9}
        v_mov_b32 v45, 0
        v_cndmask_b32 v44, 0, v44, s[40:41]
        """)
        for g in range(3):
            x = 3*n + g
            a.e(f"ds_write_b64 v13, {vr(40+2*g,2)} offset:{(x>>1)*KS + 8*(x&1)}")
    arrive(a, A_CNT, A_ONE, C_O)
    ST.stamp('O written')
    a.e(f"s_add_u32 s{S_W}, s{S_W}, 4")
    gen_reduce(a, ST, S_W)

def gen_merged(a):
    kernel_header(a, KNAME)
    ST = Stamper(a, 1)
    a.e(f"""
    s_cmp_ge_u32 s2, 256
    s_cbranch_scc1 K_END
    """)
    if XMAP == 0:
        a.e(f"s_lshr_b32 s{S_RB}, s2, 3\ns_and_b32 s{S_J}, s2, 7")
    elif XMAP == 1:
        a.e(f"""
        s_and_b32 s{S_J}, s2, 3
        s_lshl_b32 s{S_J}, s{S_J}, 1
        s_bfe_u32 s{S_T0}, s2, 0x10003
        s_or_b32 s{S_J}, s{S_J}, s{S_T0}
        s_bfe_u32 s{S_RB}, s2, 0x10002
        s_lshl_b32 s{S_RB}, s{S_RB}, 4
        s_lshr_b32 s{S_T0}, s2, 4
        s_or_b32 s{S_RB}, s{S_RB}, s{S_T0}
        """)
    elif XMAP == 2:
        a.e(f"""
        s_and_b32 s{S_J}, s2, 1
        s_lshl_b32 s{S_J}, s{S_J}, 2
        s_bfe_u32 s{S_T0}, s2, 0x20003
        s_or_b32 s{S_J}, s{S_J}, s{S_T0}
        s_bfe_u32 s{S_RB}, s2, 0x20001
        s_lshl_b32 s{S_RB}, s{S_RB}, 3
        s_lshr_b32 s{S_T0}, s2, 5
        s_or_b32 s{S_RB}, s{S_RB}, s{S_T0}
        """)
    a.e(f"""
    s_lshl_b32 s3, s{S_RB}, 3
    s_or_b32 s3, s3, s{S_J}
    v_lshrrev_b32 v2, 6, v0
    v_and_b32 v{V_LANE}, 63, v0
    s_nop 0
    v_readfirstlane_b32 s{S_W}, v2
    """)
    ST.stamp('start'); ST.rstamp(30)
    gen_entry(a, ST)
    n0 = ST.n
    a.e(f"s_cmp_ge_u32 s{S_W}, 4\ns_cbranch_scc1 K_ATT")
    gen_pre_mlp(a, ST)
    gen_mlp(a, ST)
    ST.stamp('end'); ST.rstamp(31)
    if asmlib.STAMPS: a.e("s_waitcnt vmcnt(0)")
    ST.flush(62, 63, S_W, vtmp=200)
    a.e("s_endpgm")
    mlp_names = list(ST.names)
    a.label("K_ATT")
    ST.n = n0; ST.names = ST.names[:n0]
    a.e(f"s_sub_u32 s{S_W}, s{S_W}, 4")
    gen_proj_att(a, ST)
    gen_att(a, ST)
    ST.stamp('end'); ST.rstamp(31)
    if asmlib.STAMPS: a.e("s_waitcnt vmcnt(0)")
    ST.flush(62, 63, S_W, vtmp=200)
    a.label("K_END")
    a.e("s_endpgm")
    return mlp_names, list(ST.names)

def build():
    a = Asm()
    hdr = open("gated_mix__grouped_kv_mqa__mixer_channel_mlp__prompt.s.ref").read().split("\n")
    top = [l for l in hdr if l.startswith(";") and "@launch" not in l and "Override launch" not in l and "grid=ceil" not in l]
    a.raw('.amdgcn_target "amdgcn-amd-amdhsa--gfx950"')
    a.raw(".text")
    names = gen_merged(a)
    txt = "\n".join(top) + f"\n; @launch grid=(256,1,1) block=(512,1,1) lds={LDS_BYTES}\n" + a.text() + '.section .rodata,"a"\n.p2align 6\n' + kernel_desc(KNAME, 256)
    return txt, names
if __name__ == "__main__":
    import sys
    asmlib.STAMPS = bool(os.environ.get("STAMPS"))
    out = sys.argv[1] if len(sys.argv) > 1 else "m.s"
    txt, names = build()
    open(out, "w").write(txt)
    open(out + ".mn", "w").write(",".join(names[0])); open(out + ".an", "w").write(",".join(names[1]))
    print("wrote", out)
```

```python
from asmlib import *
import asmlib
import math, os
NO_ATT = bool(os.environ.get('NO_ATT')); NO_MLP = bool(os.environ.get('NO_MLP'))
PRIO_ATT = int(os.environ.get('PRIO_ATT', '0')); PRIO_MLP = int(os.environ.get('PRIO_MLP', '0'))
FORCE_FB = bool(os.environ.get('FORCE_FB'))
PPAT = [int(c) for c in os.environ.get('PPAT', '0000')]
GELU_PRIO = int(os.environ.get('GELU_PRIO', '0'))

KNAME = "gated_mix__grouped_kv_mqa__mixer_channel_mlp__prompt_kernel"
LOG2E = math.log2(math.e)
CSCALE = LOG2E / math.sqrt(18.0)
GC2 = -2.0 * math.sqrt(2.0 / math.pi) * LOG2E
GC1 = GC2 * 0.044715

WS_KV   = 0x000000
WS_KMAX = 0x040000
WS_TAG  = 0x041000
WS_XF   = 0x042000
WS_PART = 0x100000

KS = 2080
XH = 0
RING = 36 * KS
RINGW = 18432
SLAB = 9216
OPB = RING + 4 * RINGW
CNT = OPB + 6 * KS
GW = CNT + 80
GBUF = GW + 1152
STAT = GBUF + 256
LDS_BYTES = STAT + 512
PBUF = 27648
SROW = 192
STG = OPB
C_Y, C_G1, C_H, C_G2, C_X, C_O, C_S, C_FB, C_M, C_TAG = 0, 4, 8, 12, 16, 20, 24, 28, 32, 36
C_PW, C_P, C_ST, C_STAT, C_KV, C_XF = 40, 44, 48, 52, 56, 60
C_XL, C_KVD, C_KVS = 64, 68, 72
XMAP = int(os.environ.get('XMAP', '0'))

S_RB, S_J, S_W = 28, 29, 30
S_OFF, S_STEP, S_M0B, S_IT = 31, 32, 33, 34
S_T0, S_T1, S_T2, S_T3 = 35, 36, 37, 38
S_RT, S_KH, S_KV, S_LP, S_PASS = 31, 32, 33, 34, 46
V_LANE = 1

def mk_srd(a, s, lo, hi, size):
    a.e(f"""
    s_mov_b32 s{s}, s{lo}
    s_and_b32 s{s+1}, s{hi}, 0xffff
    s_mov_b32 s{s+2}, {size}
    s_mov_b32 s{s+3}, 0x00020000
    """)
def arrive(a, vcnt, vone, off, wait=True):
    if wait: a.e("s_waitcnt lgkmcnt(0)")
    a.e(f"""
    s_mov_b64 exec, 1
    ds_add_u32 v{vcnt}, v{vone} offset:{off}
    s_mov_b64 exec, -1
    """)
def wait_cnt(a, vcnt, vtmp, off, target):
    L = a.newlabel("WAITC"); D = a.newlabel("WAITD")
    a.e("s_mov_b32 s39, 0x40000")
    a.label(L)
    a.e(f"""
    ds_read_b32 v{vtmp}, v{vcnt} offset:{off}
    s_waitcnt lgkmcnt(0)
    v_readfirstlane_b32 s{S_T3}, v{vtmp}
    s_cmp_ge_u32 s{S_T3}, {target}
    s_cbranch_scc1 {D}
    s_sleep 1
    s_sub_u32 s39, s39, 1
    s_cmp_lg_u32 s39, 0
    s_cbranch_scc1 {L}
    """)
    a.label(D)

KVW = RING + 2*PBUF
TOUCH = int(os.environ.get('TOUCH', '1'))
PF = int(os.environ.get('PF', '1'))
NSH = 16 if XMAP == 1 else (8 if XMAP == 2 else 32)
def gen_entry(a, ST):
    a.e(f"""
    s_load_dwordx4 s[48:51], s[0:1], 0       ; x, wq
    s_load_dwordx4 s[52:55], s[0:1], 16
    s_load_dwordx2 s[56:57], s[0:1], 80      ; gate_w
    s_load_dwordx4 s[60:63], s[0:1], 96
    """)

def zero_counters(a):
    a.e(f"""
    v_mov_b32 v3, {CNT}
    v_mov_b32 v20, 0
    v_mov_b32 v21, 0
    v_mov_b32 v22, 0
    v_mov_b32 v23, 0
    ds_write_b128 v3, v[20:23]
    ds_write_b128 v3, v[20:23] offset:16
    ds_write_b128 v3, v[20:23] offset:32
    ds_write_b128 v3, v[20:23] offset:48
    ds_write_b128 v3, v[20:23] offset:64
    """)

def gen_x_issue(a, ST):
    L = V_LANE
    a.e(f"s_mov_b32 s40, {(2**32 + 71)//72}")
    for i in range(9):
        a.e(f"""
        v_add_u32 v26, {64*i}, v{L}
        v_mul_hi_u32 v27, v26, s40
        v_mul_u32_u24 v3, 72, v27
        v_sub_u32 v26, v26, v3             ; pos
        v_lshrrev_b32 v28, 1, v27
        v_xor_b32 v28, v28, v26
        v_bfi_b32 v28, 7, v28, v26
        v_mul_u32_u24 v27, 1152, v27
        v_lshl_add_u32 v{4+i}, v28, 4, v27
        v_xor_b32 v28, 4, v28
        v_lshl_add_u32 v{30+i}, v28, 4, v27
        """)
    a.e(f"""
    s_mul_i32 s45, s{S_RB}, {64*1152}
    s_mul_i32 s46, s{S_W}, 18432
    s_add_u32 s45, s45, s46
    s_waitcnt lgkmcnt(0)
    s_add_u32 s42, s48, s45
    s_addc_u32 s43, s49, 0
    """)
    mk_srd(a, 24, 42, 43, 18432)
    a.e("s_mov_b32 s44, 9216")
    for h in range(2):
        for i in range(9):
            a.e(f"""
            s_add_u32 m0, s46, {XH + h*9216 + i*1024}
            s_nop 0
            buffer_load_dwordx4 v{(4 if h == 0 else 30)+i}, s[24:27], {'0' if h == 0 else 's44'} offen lds
            """)
    zero_counters(a)
    a.e(f"""
    s_cmp_lg_u32 s{S_W}, 3
    s_cbranch_scc1 E_NOGW
    v_lshlrev_b32 v3, 4, v{L}
    s_mov_b32 m0, {GW}
    s_nop 0
    global_load_lds_dwordx4 v3, s[56:57]
    s_mov_b64 exec, 0xff
    global_load_lds_dwordx4 v3, s[56:57] offset:1024
    s_mov_b64 exec, -1
    v_mov_b32 v4, 0x3f803f80
    v_mov_b32 v5, 0x3f803f80
    v_mov_b32 v6, 0x3f803f80
    v_mov_b32 v7, 0x3f803f80
    v_add_u32 v3, {XH + 73728}, v3
    ds_write_b128 v3, v[4:7]
    s_mov_b64 exec, 0xff
    ds_write_b128 v3, v[4:7] offset:1024
    s_mov_b64 exec, -1
    """)
    a.label("E_NOGW")
    a.e("s_waitcnt lgkmcnt(0)\ns_barrier")
    ST.stamp('x iss')

def xb_addr(a, L, rt_sgpr, dst):
    a.e(f"v_lshrrev_b32 v26, 5, v{L}\nv_and_b32 v27, 31, v{L}")
    if rt_sgpr is None:
        a.e("v_mul_u32_u24 v28, 1152, v27")
    else:
        a.e(f"s_lshl_b32 s36, s{rt_sgpr}, 5\nv_add_u32 v28, s36, v27\nv_mul_u32_u24 v28, 1152, v28")
    a.e("v_bfe_u32 v29, v27, 1, 3")
    for b in range(4):
        a.e(f"v_add_u32 v30, {2*b}, v26\nv_xor_b32 v30, v30, v29\nv_lshl_add_u32 v{dst+b}, v30, 4, v28")

def norm_sum(a, dst, regs, tmp):
    a.e(f"v_mov_b32 v{dst}, 0")
    for r in regs:
        a.e(f"v_dot2_f32_bf16 v{dst}, v{r}, v{r}, v{dst}")
    a.e(f"""
    s_nop 3
    v_mov_b32 v{tmp}, v{dst}
    s_nop 1
    v_permlane32_swap_b32 v{dst}, v{tmp}
    s_nop 1
    v_add_f32 v{dst}, v{dst}, v{tmp}
    """)

def gen_pre_mlp(a, ST):
    L = V_LANE
    BF, AF, SA = 16, 40, 112
    gen_x_issue(a, ST)
    a.e(f"""
    v_mov_b32 v84, {CNT}
    v_mov_b32 v85, 1
    s_setprio 3
    """)
    a.e(f"s_and_b32 s37, s{S_W}, 1")
    xb_addr(a, L, 37, 4)
    a.e(f"""
    v_and_b32 v27, 31, v{L}
    v_cmp_eq_u32 s[46:47], 1, v27
    v_mov_b32 v28, {GW}
    v_mov_b32 v29, {XH + 73728}
    v_lshrrev_b32 v26, 5, v{L}
    v_cndmask_b32 v28, v28, v29, s[46:47]
    v_lshl_add_u32 v82, v26, 4, v28
    v_bfe_u32 v27, v{L}, 4, 1
    v_bfe_u32 v28, v{L}, 2, 2
    v_and_b32 v29, 3, v{L}
    v_lshl_add_u32 v30, v26, 3, v28          ; 8hf + r
    v_mul_u32_u24 v31, 40, v30
    v_lshl_add_u32 v31, v27, 5, v31
    v_lshl_add_u32 v31, v29, 3, v31
    v_add_u32 v77, {KVW}, v31
    v_lshlrev_b32 v78, 4, v{L}
    v_lshlrev_b32 v79, 2, v{L}
    v_mov_b32 v80, 0
    v_mov_b32 v81, 0
    """)
    mk_srd(a, 20, 62, 63, 0x10000000)
    a.e("s_waitcnt vmcnt(0)")
    arrive(a, 84, 85, C_XL, wait=False)
    wait_cnt(a, 84, 3, C_XL, 4)
    ST.stamp('x landed')
    def chain(kind):
        def rd(s):
            st = s % 4
            r = [f"ds_read_b128 {vr(BF+4*st,4)}, v{4+(s&3)} offset:{128*(s>>2)}"]
            if kind == 0: r.append(f"ds_read_b128 {vr(AF+4*st,4)}, v82 offset:{32*s}")
            return r
        n = 2 if kind == 0 else 1
        for s_ in range(3):
            for x in rd(s_): a.e(x)
        for s_ in range(36):
            issued = min(36, s_ + 3)
            a.e(f"s_waitcnt lgkmcnt({n*(issued - s_ - 1)})")
            st = s_ % 4
            c = "0" if s_ == 0 else vr(SA,16)
            A_ = vr(AF+4*st,4) if kind == 0 else vr(BF+4*st,4)
            a.e(f"v_mfma_f32_32x32x16_bf16 {vr(SA,16)}, {A_}, {vr(BF+4*st,4)}, {c}")
            if s_ + 3 < 36:
                for x in rd(s_ + 3): a.e(x)
        a.e(f"""
        v_and_b32 v26, 31, v{L}
        s_lshl_b32 s36, s37, 5
        v_add_u32 v27, s36, v26                   ; row
        """)
        if kind == 0:
            a.e(f"""
            v_lshlrev_b32 v28, 2, v27
            v_add_u32 v28, {GBUF}, v28
            v_lshlrev_b32 v29, 3, v27
            v_add_u32 v29, {STAT}, v29
            s_nop 7
            s_mov_b32 exec_hi, 0
            ds_write_b32 v29, v{SA+1}
            s_mov_b64 exec, -1
            """)
            arrive(a, 84, 85, C_STAT)
            a.e(f"""
            v_mul_f32 v30, {hexf(-LOG2E)}, v{SA}
            v_exp_f32 v30, v30
            s_nop 0
            v_add_f32 v30, 1.0, v30
            v_rcp_f32 v30, v30
            s_mov_b32 exec_hi, 0
            s_nop 0
            ds_write_b32 v28, v30
            s_mov_b64 exec, -1
            """)
        else:
            a.e(f"""
            v_lshlrev_b32 v29, 3, v27
            v_add_u32 v29, {STAT+4}, v29
            v_and_b32 v30, 1, v26
            v_cmp_ne_u32 s[40:41], 0, v30
            v_and_b32 v30, 2, v26
            v_cmp_ne_u32 s[42:43], 0, v30
            v_and_b32 v30, 8, v26
            v_cmp_ne_u32 s[44:45], 0, v30
            v_and_b32 v30, 16, v26
            v_cmp_ne_u32 s[46:47], 0, v30
            s_nop 1
            """)
            for i in range(8): a.e(f"v_cndmask_b32 v{SA+i}, v{SA+2*i}, v{SA+2*i+1}, s[40:41]")
            for i in range(4): a.e(f"v_cndmask_b32 v{SA+i}, v{SA+2*i}, v{SA+2*i+1}, s[42:43]")
            for i in range(2): a.e(f"v_cndmask_b32 v{SA+i}, v{SA+2*i}, v{SA+2*i+1}, s[44:45]")
            a.e(f"""
            v_cndmask_b32 v{SA}, v{SA}, v{SA+1}, s[46:47]
            v_bfe_u32 v30, v26, 2, 1
            v_lshrrev_b32 v31, 5, v{L}
            v_cmp_eq_u32 s[40:41], v30, v31
            s_nop 1
            s_mov_b64 exec, s[40:41]
            ds_write_b32 v29, v{SA}
            s_mov_b64 exec, -1
            """)
            arrive(a, 84, 85, C_STAT)
    a.e(f"s_cmp_lt_u32 s{S_J}, 2\ns_cbranch_scc1 S_PROD")
    a.e(f"s_cmp_ge_u32 s{S_W}, 2\ns_cbranch_scc1 S_CH1")
    chain(0)
    a.e("s_branch S_DONE")
    a.label("S_CH1")
    chain(1)
    a.e("s_branch S_DONE")
    a.label("S_PROD")
    a.e(f"s_cmp_lt_u32 s{S_W}, 2\ns_cbranch_scc1 S_KV")
    chain(1)
    chain(0)
    a.e("s_branch S_DONE")
    a.label("S_KV")
    wait_cnt(a, 84, 3, C_KVD, 4)
    def kvloop(isK):
        def rd(s):
            st = s % 4
            return [f"ds_read_b128 {vr(BF+4*st,4)}, v{4+(s&3)} offset:{128*(s>>2)}",
                    f"ds_read_b64_tr_b16 {vr(AF+4*st,2)}, v77 offset:{s*640}",
                    f"ds_read_b64_tr_b16 {vr(AF+4*st+2,2)}, v77 offset:{s*640+160}"]
        for s in range(3):
            for x in rd(s): a.e(x)
        for s in range(36):
            issued = min(36, s + 3)
            a.e(f"s_waitcnt lgkmcnt({3*(issued - s - 1)})")
            st = s % 4
            c = "0" if s == 0 else vr(SA,16)
            if isK: a.e(f"v_mfma_f32_32x32x16_bf16 {vr(SA,16)}, {vr(AF+4*st,4)}, {vr(BF+4*st,4)}, {c}")
            else:   a.e(f"v_mfma_f32_32x32x16_bf16 {vr(SA,16)}, {vr(BF+4*st,4)}, {vr(AF+4*st,4)}, {c}")
            if s + 3 < 36:
                for x in rd(s + 3): a.e(x)
    a.e(f"""
    v_lshrrev_b32 v13, 5, v{L}
    v_cmp_eq_u32 s[42:43], 0, v13                 ; hf==0
    s_lshl_b32 s46, s{S_RB}, 1
    s_add_u32 s46, s46, s{S_W}
    s_lshl_b32 s47, s46, 12
    s_add_u32 s47, s47, {WS_KV}
    s_cmp_eq_u32 s{S_J}, 1
    s_cbranch_scc1 S_V
    s_mov_b32 s36, {WS_TAG}
    buffer_load_dword v81, v80, s[20:23], s36 offen sc1
    """)
    kvloop(True)
    arrive(a, 84, 85, C_KVD)
    a.e("s_nop 7")
    B = 128
    for d in range(5):
        a.e(f"v_cvt_pk_bf16_f32 v{B+d}, v{SA+2*d}, v{SA+2*d+1}")
    a.e(f"v_cndmask_b32 v{B+4}, 0, v{B+4}, s[42:43]")
    norm_sum(a, B+5, [B, B+1, B+2, B+3, B+4], B+6)
    a.e(f"""
    v_mov_b32 v13, 0x3f803f80
    v_cndmask_b32 v{B+4}, v13, v{B+4}, s[42:43]
    buffer_store_dwordx4 {vr(B,4)}, v78, s[20:23], s47 offen sc1
    buffer_store_dword v{B+4}, v79, s[20:23], s47 offen offset:3072 sc1
    """)
    for pat in ["quad_perm:[1,0,3,2]", "quad_perm:[2,3,0,1]", "row_ror:4", "row_ror:8"]:
        a.e(f"v_max_f32_dpp v{B+5}, v{B+5}, v{B+5} {pat} row_mask:0xf bank_mask:0xf\ns_nop 1")
    a.e(f"""
    ds_swizzle_b32 v{B+6}, v{B+5} offset:{(16<<10)|0x1f}
    s_waitcnt lgkmcnt(0)
    v_max_f32 v{B+5}, v{B+5}, v{B+6}
    s_lshl_b32 s46, s46, 2
    s_add_u32 s46, s46, {WS_KMAX}
    s_mov_b64 exec, 1
    buffer_store_dword v{B+5}, v80, s[20:23], s46 offen sc1
    s_mov_b64 exec, -1
    s_branch S_KVST
    """)
    a.label("S_V")
    kvloop(False)
    arrive(a, 84, 85, C_KVD)
    a.e(f"""
    v_and_b32 v13, 31, v{L}
    v_mov_b32 v81, 0x3f803f80
    v_cmp_eq_u32 s[40:41], 18, v13
    v_cmp_lt_u32 s[44:45], 18, v13
    s_nop 3
    """)
    for d in range(8):
        a.e(f"v_cvt_pk_bf16_f32 v{B+d}, v{SA+2*d}, v{SA+2*d+1}")
    for d in range(8):
        a.e(f"v_cndmask_b32 v{B+d}, v{B+d}, v81, s[40:41]")
    for d in range(8):
        a.e(f"v_cndmask_b32 v{B+d}, v{B+d}, 0, s[44:45]")
    a.e(f"""
    buffer_store_dwordx4 {vr(B,4)}, v78, s[20:23], s47 offen offset:1024 sc1
    buffer_store_dwordx4 {vr(B+4,4)}, v78, s[20:23], s47 offen offset:2048 sc1
    """)
    a.label("S_KVST")
    ST.stamp('KV st')
    a.e(f"""
    s_waitcnt vmcnt(0)
    s_mov_b64 exec, 1
    ds_add_rtn_u32 v13, v84, v85 offset:{C_KVS}
    s_waitcnt lgkmcnt(0)
    v_readfirstlane_b32 s46, v13
    s_cmp_lg_u32 s46, 1
    s_cbranch_scc1 S_FLD
    v_mov_b32 v13, 1
    s_cmp_lg_u32 s3, 0
    s_cbranch_scc1 S_FLV
    v_add_u32 v13, 1, v81
    v_cmp_eq_u32 s[40:41], 0, v13
    s_mov_b32 s46, {WS_TAG}
    s_nop 0
    v_cndmask_b32 v13, v13, 1, s[40:41]
    s_nop 0
    buffer_store_dword v13, v80, s[20:23], s46 offen sc1
    """)
    a.label("S_FLV")
    a.e(f"""
    s_lshl_b32 s46, s{S_RB}, 3
    s_lshl_b32 s47, s{S_J}, 2
    s_add_u32 s46, s46, s47
    v_mov_b32 v3, s46
    global_store_dword v3, v13, s[60:61] sc1
    """)
    a.label("S_FLD")
    a.e("s_mov_b64 exec, -1")
    ST.stamp('KV pub')
    a.label("S_DONE")
    a.e("s_setprio 0")
    ST.stamp('pre done')

def gen_proj_att(a, ST):
    L = V_LANE
    ACC, BF, AF = 144, 16, 40
    a.e("s_setprio 2")
    a.e(f"""
    s_and_b32 s{S_RT}, s{S_W}, 1
    s_lshr_b32 s{S_KH}, s{S_W}, 1
    s_mov_b32 s41, {(2**32 + 11)//12}
    v_mov_b32 v14, {CNT}
    v_mov_b32 v15, 1
    s_and_b32 s44, s{S_J}, 3
    s_lshl_b32 s44, s44, 4               ; shift = 16*(j&3)
    s_mul_i32 s45, s{S_J}, 144
    s_sub_u32 s45, s45, s44
    """)
    for b in range(3):
        a.e(f"""
        s_add_u32 s46, s{S_W}, {4*b}
        s_lshl_b32 s46, s46, 6
        v_add_u32 v26, s46, v{L}
        v_mul_hi_u32 v27, v26, s41         ; row
        v_mul_u32_u24 v3, 12, v27
        v_sub_u32 v26, v26, v3             ; c
        v_mul_u32_u24 v27, 1152, v27
        v_lshl_add_u32 v27, v26, 4, v27
        v_add_u32 v{8+b}, s45, v27
        """)
    a.e(f"""
    v_lshrrev_b32 v26, 5, v{L}
    v_bfe_u32 v27, v{L}, 4, 1
    v_bfe_u32 v28, v{L}, 2, 2
    v_and_b32 v29, 3, v{L}
    v_lshl_add_u32 v30, v26, 3, v28          ; 8hf + r
    v_mul_u32_u24 v30, 192, v30
    v_lshl_add_u32 v30, v27, 5, v30
    v_lshl_add_u32 v30, v29, 3, v30
    s_mul_i32 s46, s{S_KH}, 72
    s_add_u32 s46, s46, s44
    v_add_u32 v11, s46, v30
    v_add_u32 v12, 32, v11
    """)
    xb_addr(a, L, S_RT, 4)
    a.e(f"s_mov_b32 s40, {(2**32 + 9)//10}")
    for b in range(5):
        a.e(f"""
        s_add_u32 s46, s{S_W}, {4*b}
        s_lshl_b32 s46, s46, 6
        v_add_u32 v26, s46, v{L}
        v_mul_hi_u32 v27, v26, s40
        v_mul_u32_u24 v3, 10, v27
        v_sub_u32 v26, v26, v3
        v_min_u32 v26, 8, v26
        v_mul_u32_u24 v27, 36, v27
        v_lshl_add_u32 v{72+b}, v26, 2, v27
        """)
    zero_counters(a)
    a.e("s_waitcnt lgkmcnt(0)\ns_barrier")
    mk_srd(a, 20, 62, 63, 0x10000000)
    def issue_w(q, buf, tag):
        for i in range(7):
            aa, b = divmod(i, 3)
            if i == 6: a.e(f"s_cmp_ge_u32 s{S_W}, 3\ns_cbranch_scc1 PW_SKIP_{tag}")
            a.e(f"""
            s_lshl_b32 s46, s{S_W}, 10
            s_add_u32 m0, s46, {RING + buf*PBUF + i*4096}
            s_mov_b32 s47, {q*144*1152 + aa*64*1152}
            buffer_load_dwordx4 v{8+b}, s[24:27], s47 offen lds
            """)
        a.label(f"PW_SKIP_{tag}")
    a.e(f"""
    s_cmp_ge_u32 s{S_J}, 2
    s_cbranch_scc1 PA_NOKVI
    s_cmp_eq_u32 s{S_J}, 1
    s_cselect_b32 s42, s54, s52
    s_cselect_b32 s43, s55, s53
    """)
    mk_srd(a, 24, 42, 43, 576*36)
    for i in range(23):
        aa, b = divmod(i, 5)
        if i == 22: a.e(f"s_cmp_ge_u32 s{S_W}, 2\ns_cbranch_scc1 PA_NOKVI")
        a.e(f"""
        s_lshl_b32 s46, s{S_W}, 8
        s_add_u32 m0, s46, {KVW + i*1024}
        s_mov_b32 s47, {aa*128*36}
        buffer_load_dword v{72+b}, s[24:27], s47 offen lds
        """)
    a.label("PA_NOKVI")
    mk_srd(a, 24, 50, 51, 576*1152)
    issue_w(0, 0, "q0"); issue_w(1, 1, "q1")
    a.e(f"s_cmp_lt_u32 s{S_J}, 2\ns_cbranch_scc1 PA_NOQ2")
    issue_w(2, 2, "q2a")
    a.e("s_branch PA_ISS")
    a.label("PA_NOQ2")
    a.e("s_waitcnt vmcnt(12)")
    arrive(a, 14, 15, C_KVD, wait=False)
    a.label("PA_ISS")
    ST.stamp('W iss')
    if TOUCH:
        a.e(f"""
        s_load_dwordx2 s[40:41], s[0:1], 32      ; wo
        s_load_dwordx4 s[44:47], s[0:1], 48      ; w1, b1
        s_load_dwordx4 s[52:55], s[0:1], 64      ; w2, b2
        s_load_dwordx2 s[42:43], s[0:1], 88      ; out
        s_waitcnt lgkmcnt(0)
        s_cmp_eq_u32 s{S_W}, 3
        s_cbranch_scc1 E_T7
        s_and_b32 s36, s{S_RB}, {NSH-1}
        s_lshl_b32 s36, s36, 6
        s_min_u32 s37, s{S_W}, 1
        s_mul_i32 s37, s37, {64*NSH}
        s_add_u32 s36, s36, s37
        v_add_u32 v26, s36, v{L}
        s_mov_b32 s36, {(2**32 + 8)//9}
        v_mul_hi_u32 v27, v26, s36
        v_mul_u32_u24 v28, 9, v27
        v_sub_u32 v26, v26, v28
        v_mul_u32_u24 v27, 9216, v27
        v_lshl_add_u32 v26, v26, 7, v27
        s_mul_i32 s37, s{S_J}, 1152
        v_add_u32 v26, s37, v26
        global_load_dword v252, v26, s[44:45]
        s_branch E_NOT
        """)
        a.label("E_T7")
        a.e(f"""
        s_mul_i32 s36, s{S_J}, {576*1152}
        s_add_u32 s52, s52, s36
        s_addc_u32 s53, s53, 0
        s_mul_i32 s36, s{S_J}, {72*1152}
        s_add_u32 s40, s40, s36
        s_addc_u32 s41, s41, 0
        s_mul_i32 s36, s{S_RB}, {64*1152}
        s_add_u32 s42, s42, s36
        s_addc_u32 s43, s43, 0
        s_mul_i32 s36, s3, {72*1024}
        s_add_u32 s36, s36, {WS_PART}
        s_add_u32 s44, s62, s36
        s_addc_u32 s45, s63, 0
        v_mov_b32 v26, s62
        v_mov_b32 v27, s63
        v_writelane_b32 v26, s52, 0
        v_writelane_b32 v27, s53, 0
        v_writelane_b32 v26, s40, 1
        v_writelane_b32 v27, s41, 1
        v_writelane_b32 v26, s46, 2
        v_writelane_b32 v27, s47, 2
        v_writelane_b32 v26, s54, 3
        v_writelane_b32 v27, s55, 3
        v_writelane_b32 v26, s42, 4
        v_writelane_b32 v27, s43, 4
        v_writelane_b32 v26, s44, 6
        v_writelane_b32 v27, s45, 6
        s_mov_b64 exec, 0xff
        global_load_dword v252, v[26:27], off
        s_mov_b64 exec, -1
        """)
        a.label("E_NOT")
    NT = 1 if TOUCH else 0
    wait_cnt(a, 14, 3, C_XL, 4)
    ST.stamp('x landed')
    tgt = [4]
    def wsync(vm):
        a.e(f"s_waitcnt vmcnt({vm})")
        arrive(a, 14, 15, C_PW, wait=True)
        wait_cnt(a, 14, 3, C_PW, tgt[0]); tgt[0] += 4
    def compute(q, buf):
        a.e(f"v_add_u32 v2, {RING + buf*PBUF}, v11\nv_add_u32 v13, {RING + buf*PBUF}, v12")
        def rd(s):
            S = 9*q + s; st = s % 4
            return [f"ds_read_b128 {vr(BF+4*st,4)}, v{4+(S&3)} offset:{128*(S>>2)}",
                    f"ds_read_b64_tr_b16 {vr(AF+8*st,2)}, v2 offset:{s*3072}",
                    f"ds_read_b64_tr_b16 {vr(AF+8*st+2,2)}, v2 offset:{s*3072+768}",
                    f"ds_read_b64_tr_b16 {vr(AF+8*st+4,2)}, v13 offset:{s*3072}",
                    f"ds_read_b64_tr_b16 {vr(AF+8*st+6,2)}, v13 offset:{s*3072+768}"]
        D = 3
        for s in range(D):
            for x in rd(s): a.e(x)
        for s in range(9):
            issued = min(9, s + D)
            a.e(f"s_waitcnt lgkmcnt({5*(issued - s - 1)})")
            st = s % 4
            c0 = "0" if (q == 0 and s == 0) else vr(ACC,16); c1 = "0" if (q == 0 and s == 0) else vr(ACC+16,16)
            a.e(f"v_mfma_f32_32x32x16_bf16 {vr(ACC,16)}, {vr(AF+8*st,4)}, {vr(BF+4*st,4)}, {c0}")
            a.e(f"v_mfma_f32_32x32x16_bf16 {vr(ACC+16,16)}, {vr(AF+8*st+4,4)}, {vr(BF+4*st,4)}, {c1}")
            if s + D < 9:
                for x in rd(s + D): a.e(x)
    a.e(f"s_cmp_lt_u32 s{S_J}, 2\ns_cbranch_scc1 PA_PROD")
    wsync(12 + NT)
    compute(0, 0)
    a.e("s_branch PA_J1")
    a.label("PA_PROD")
    tgt[0] = 4
    wsync(6 + NT)
    compute(0, 0)
    wait_cnt(a, 14, 3, C_KVD, 6)
    issue_w(2, 2, "q2b")
    a.label("PA_J1")
    wsync(6)
    issue_w(3, 0, "q3")
    compute(1, 1)
    wsync(6)
    compute(2, 2)
    wsync(0)
    compute(3, 0)
    arrive(a, 14, 15, C_P)
    ST.stamp('P computed')

V_B, V_BX, V_A, V_AX, V_OM, V_OX = 2, 6, 8, 12, 13, 14
V_T = 15
SETA = [16, 40]; SETB = [32, 56]
AX, BX = 64, 68
V_CNT, V_ONE = 84, 85
V_G = 86
V_OM2, V_OX2 = 92, 93
V_OMW, V_OMWH, V_OOB = 94, 95, 96
V_OXW = 97
V_BI = 100
ACC = 112
def acc(t, rt): return ACC + (t * 2 + rt) * 16
def accx(rt, rh): return 240 + (rt * 2 + rh) * 4

def merge(x, y):
    if not y: return list(x)
    if not x: return list(y)
    out = []; step = len(x) / len(y); yi = 0
    for i, e in enumerate(x):
        out.append(e)
        while yi < len(y) and (yi + 0.5) * step <= i + 1:
            out.append(y[yi]); yi += 1
    while yi < len(y):
        out.append(y[yi]); yi += 1
    return out

class GemmGen:
    def __init__(self, a, mode):
        self.a = a
        self.mode = mode
        self.perm = (mode == 'h')
    def b_main(self, dst, rel):
        if self.mode == 'x':
            return [f"ds_read_b128 {vr(SETB[dst]+4*rt,4)}, v{V_B+(rel&3)} offset:{128*(rel>>2) + rt*36864}" for rt in range(2)]
        return [f"ds_read_b128 {vr(SETB[dst]+4*rt,4)}, v{V_B} offset:{rel*KS + rt*1024}" for rt in range(2)]
    def b_extra(self, rel):
        L = []
        for rt in range(2):
            for rh in range(2):
                if self.mode == 'x':
                    e = (rel >> 1) & 1
                    L.append(f"ds_read_b128 {vr(BX+4*(2*rt+rh),4)}, v{V_BX+e} offset:{128*(rel>>2) + (32*rt+16*rh)*1152}")
                else:
                    L.append(f"ds_read_b128 {vr(BX+4*(2*rt+rh),4)}, v{V_BX} offset:{rel*KS + rt*1024 + rh*256}")
        return L
    def reads_main(self, b, ks, dst, rel):
        L = self.b_main(dst, rel)
        second = 2048 if self.perm else 1024
        for t in range(4):
            base = b * SLAB + ks * 4096
            L.append(f"ds_read_b64_tr_b16 {vr(SETA[dst]+4*t,2)}, v{V_A+t} offset:{base}")
            L.append(f"ds_read_b64_tr_b16 {vr(SETA[dst]+4*t+2,2)}, v{V_A+t} offset:{base+second}")
        return L
    def reads_extra(self, b, rel):
        second = 256 if self.perm else 128
        L = [f"ds_read_b64_tr_b16 {vr(AX,2)}, v{V_AX} offset:{b*SLAB + 8192}",
             f"ds_read_b64_tr_b16 {vr(AX+2,2)}, v{V_AX} offset:{b*SLAB + 8192 + second}"]
        return L + self.b_extra(rel)
    def mfmas_main(self, src):
        return [f"v_mfma_f32_32x32x16_bf16 {vr(acc(t,rt),16)}, {vr(SETA[src]+4*t,4)}, {vr(SETB[src]+4*rt,4)}, {vr(acc(t,rt),16)}"
                for t in range(4) for rt in range(2)]
    def mfmas_extra(self):
        return [f"v_mfma_f32_16x16x32_bf16 {vr(accx(rt,rh),4)}, {vr(AX,4)}, {vr(BX+4*(2*rt+rh),4)}, {vr(accx(rt,rh),4)}"
                for rt in range(2) for rh in range(2)]
    def interleave(self, mf, others):
        a = self.a; n = len(mf); k = 0
        per = -(-len(others) // n) if n else 0
        for m in mf:
            a.e(m)
            for _ in range(per):
                if k < len(others):
                    a.e(others[k]); k += 1
        while k < len(others):
            a.e(others[k]); k += 1
    def dstep(self, b, rel, dma0, dma1, vm0, vm1, next_reads=True):
        a = self.a
        a.e(f"s_waitcnt vmcnt({vm0}) lgkmcnt(0)" if vm0 is not None else "s_waitcnt lgkmcnt(0)")
        rd = self.reads_main(b, 1, 1, rel + 1) + self.reads_extra(b, rel)
        self.interleave(self.mfmas_main(0), merge(rd, dma0))
        a.e(f"s_waitcnt vmcnt({vm1}) lgkmcnt(0)" if vm1 is not None else "s_waitcnt lgkmcnt(0)")
        rd = self.reads_main(1 - b, 0, 0, rel + 2) if next_reads else []
        self.interleave(self.mfmas_main(1) + self.mfmas_extra(), merge(rd, dma1))
    def advance(self):
        a = self.a
        if self.mode == 'x':
            for b in range(4): a.e(f"v_add_u32 v{V_B+b}, 128, v{V_B+b}")
            for e in range(2): a.e(f"v_add_u32 v{V_BX+e}, 128, v{V_BX+e}")
        else:
            a.e(f"v_add_u32 v{V_B}, {4*KS}, v{V_B}\nv_add_u32 v{V_BX}, {4*KS}, v{V_BX}")

def dma_regular(b, phase, vom, vox):
    L = []
    for p in (range(4) if phase == 0 else range(4, 8)):
        L.append(f"s_add_u32 m0, s{S_M0B}, {b*SLAB + p*1024}\ns_nop 0\nbuffer_load_dwordx4 v{vom}, s[4:7], s{S_OFF} offen lds\ns_add_u32 s{S_OFF}, s{S_OFF}, s{S_STEP}")
    if phase == 1:
        L.append(f"s_add_u32 m0, s{S_M0B}, {b*SLAB + 8192}\ns_lshl_b32 s{S_T0}, s{S_STEP}, 3\ns_sub_u32 s{S_T0}, s{S_OFF}, s{S_T0}\nbuffer_load_dwordx4 v{vox}, s[4:7], s{S_T0} offen lds")
    return L
def dma_wo(slab, b, phase):
    L = []
    for pp in (range(4) if phase == 0 else range(4, 8)):
        p = 8 * slab + pp
        m = p % 6
        so = (18 * (p // 6) + 4 * m) * 1152
        voff = V_OMW if m <= 3 else (V_OMWH if m == 4 else V_OOB)
        if m == 5: so = 0
        L.append(f"s_add_u32 m0, s{S_M0B}, {b*SLAB + pp*1024}\ns_mov_b32 s{S_T0}, {so}\nbuffer_load_dwordx4 v{voff}, s[16:19], s{S_T0} offen lds")
    if phase == 1:
        L.append(f"s_add_u32 m0, s{S_M0B}, {b*SLAB + 8192}\ns_nop 0\nbuffer_load_dwordx4 v{V_OXW+slab}, s[16:19], 0 offen lds")
    return L

def gen_reduce(a, ST, wave_expr_sgpr, vb=16):
    L = V_LANE
    P1 = a.newlabel("XFP"); P2 = a.newlabel("XFD"); P3 = a.newlabel("XFW")
    a.e(f"""
    v_mov_b32 v{vb+2}, {CNT}
    v_mov_b32 v{vb+3}, 1
    s_cmp_lg_u32 s{wave_expr_sgpr}, 7
    s_cbranch_scc1 {P3}
    s_lshl_b32 s{S_T0}, s{S_RB}, 7
    s_add_u32 s{S_T0}, s{S_T0}, {WS_XF}
    v_and_b32 v{vb}, 7, v{L}
    v_lshlrev_b32 v{vb}, 2, v{vb}
    s_mov_b32 s39, 0x100000
    """)
    a.label(P1)
    a.e(f"""
    buffer_load_dword v{vb+1}, v{vb}, s[20:23], s{S_T0} offen sc1
    s_waitcnt vmcnt(0)
    v_cmp_ne_u32 vcc, s47, v{vb+1}
    s_nop 1
    s_cmp_eq_u64 vcc, 0
    s_cbranch_scc1 {P2}
    s_sleep 2
    s_sub_u32 s39, s39, 1
    s_cmp_lg_u32 s39, 0
    s_cbranch_scc1 {P1}
    """)
    a.label(P2)
    arrive(a, vb+2, vb+3, C_XF, wait=False)
    a.label(P3)
    wait_cnt(a, vb+2, vb, C_XF, 1)
    ST.stamp('flags ok')
    a.e(f"""
    s_load_dwordx2 s[48:49], s[0:1], 88
    s_waitcnt lgkmcnt(0)
    """)
    mk_srd(a, 24, 48, 49, 2048*576*2)
    def do_block(blk_sgpr):
        D = vb + 4
        a.e(f"""
        s_mul_i32 s{S_T0}, s{S_J}, 9
        s_add_u32 s{S_T0}, s{S_T0}, s{blk_sgpr}        ; bi
        s_lshl_b32 s{S_T1}, s{S_RB}, 3
        s_mul_i32 s{S_T1}, s{S_T1}, {72*1024}
        s_lshl_b32 s{S_T2}, s{S_T0}, 10
        s_add_u32 s{S_T1}, s{S_T1}, s{S_T2}
        s_add_u32 s{S_T1}, s{S_T1}, {WS_PART}
        v_lshlrev_b32 v{vb}, 4, v{L}
        """)
        for js in range(8):
            a.e(f"buffer_load_dwordx4 {vr(D+4*js,4)}, v{vb}, s[20:23], s{S_T1} offen sc1")
            if js < 7: a.e(f"s_add_u32 s{S_T1}, s{S_T1}, {72*1024}")
        a.e(f"""
        s_mul_hi_u32 s40, s{S_T0}, {(2**32+17)//18}      ; wsrc
        s_mul_i32 s41, s40, 18
        s_sub_u32 s41, s{S_T0}, s41                      ; pair
        s_lshl_b32 s42, s{S_RB}, 6
        s_cmp_ge_u32 s41, 16
        s_cselect_b32 s43, 1, 0
        """)
        LX = a.newlabel("RX"); LD = a.newlabel("RD")
        a.e(f"""
        s_cbranch_scc1 {LX}
        s_lshr_b32 s44, s41, 1               ; t*2+rt
        s_and_b32 s45, s44, 1                ; rt
        s_lshr_b32 s44, s44, 1               ; t
        s_lshl_b32 s45, s45, 5
        s_add_u32 s42, s42, s45
        s_mul_i32 s42, s42, 1152
        s_lshl_b32 s45, s40, 8
        s_add_u32 s42, s42, s45
        s_lshl_b32 s45, s44, 6
        s_add_u32 s42, s42, s45
        s_and_b32 s45, s41, 1
        s_lshl_b32 s45, s45, 5
        s_add_u32 s42, s42, s45
        v_and_b32 v{vb+1}, 31, v{L}
        v_mul_u32_u24 v{vb+1}, 1152, v{vb+1}
        v_lshrrev_b32 v{vb+2}, 5, v{L}
        v_lshl_add_u32 v{vb+1}, v{vb+2}, 4, v{vb+1}
        s_branch {LD}
        """)
        a.label(LX)
        a.e(f"""
        s_sub_u32 s45, s41, 16               ; rt
        s_lshl_b32 s45, s45, 5
        s_add_u32 s42, s42, s45
        s_mul_i32 s42, s42, 1152
        s_lshl_b32 s45, s40, 5
        s_add_u32 s42, s42, s45
        s_add_u32 s42, s42, 1024
        v_and_b32 v{vb+1}, 15, v{L}
        v_mul_u32_u24 v{vb+1}, 1152, v{vb+1}
        v_lshrrev_b32 v{vb+2}, 4, v{L}
        v_lshl_add_u32 v{vb+1}, v{vb+2}, 3, v{vb+1}
        """)
        a.label(LD)
        A = D + 32
        T = A + 8
        for js in range(8):
            a.e(f"s_waitcnt vmcnt({7-js})")
            for d in range(4):
                src = D + 4*js + d
                if js == 0:
                    a.e(f"v_lshlrev_b32 v{A+2*d}, 16, v{src}\nv_and_b32 v{A+2*d+1}, 0xffff0000, v{src}")
                else:
                    a.e(f"v_lshlrev_b32 v{T+2*d}, 16, v{src}\nv_and_b32 v{T+2*d+1}, 0xffff0000, v{src}")
            if js:
                for d in range(4):
                    a.e(f"v_pk_add_f32 {vr(A+2*d,2)}, {vr(A+2*d,2)}, {vr(T+2*d,2)}")
        for d in range(4):
            a.e(f"v_cvt_pk_bf16_f32 v{T+d}, v{A+2*d}, v{A+2*d+1}")
        LX2 = a.newlabel("RX"); LD2 = a.newlabel("RD")
        a.e(f"""
        s_cmp_eq_u32 s43, 1
        s_cbranch_scc1 {LX2}
        s_nop 0
        v_permlane32_swap_b32 v{T}, v{T+2}
        v_permlane32_swap_b32 v{T+1}, v{T+3}
        s_nop 1
        buffer_store_dwordx4 {vr(T,4)}, v{vb+1}, s[24:27], s42 offen
        s_branch {LD2}
        """)
        a.label(LX2)
        a.e(f"""
        s_add_u32 s45, s42, {16*1152}
        buffer_store_dwordx2 {vr(T,2)}, v{vb+1}, s[24:27], s42 offen
        buffer_store_dwordx2 {vr(T+2,2)}, v{vb+1}, s[24:27], s45 offen
        """)
        a.label(LD2)
    a.e(f"s_mov_b32 s46, s{wave_expr_sgpr}")
    do_block(46)
    LE = a.newlabel("RE")
    a.e(f"s_cmp_lg_u32 s{wave_expr_sgpr}, 4\ns_cbranch_scc1 {LE}\ns_mov_b32 s46, 8")
    do_block(46)
    a.label(LE)

def gen_mlp(a, ST):
    L = V_LANE
    a.e(f"""
    s_load_dwordx2 s[48:49], s[0:1], 32      ; wo
    s_load_dwordx4 s[52:55], s[0:1], 48      ; w1, b1
    s_load_dwordx4 s[56:59], s[0:1], 64      ; w2, b2
    v_mov_b32 v{V_CNT}, {CNT}
    v_mov_b32 v{V_ONE}, 1
    """)
    if PRIO_MLP: a.e(f"s_setprio {PRIO_MLP}")
    a.e(f"""
    v_lshrrev_b32 v16, 4, v{L}               ; l>>4
    v_and_b32 v17, 15, v{L}                  ; i
    v_lshlrev_b32 v18, 2, v16
    v_xor_b32 v18, v17, v18
    v_lshlrev_b32 v18, 4, v18
    s_lshl_b32 s{S_T1}, s{S_W}, 8
    v_add_u32 v18, s{S_T1}, v18              ; swz + 256w
    v_mul_u32_u24 v19, 9216, v16
    v_add_u32 v{V_OM}, v19, v18
    v_mul_u32_u24 v19, 1152, v16
    v_add_u32 v{V_OM2}, v19, v18
    v_mov_b32 v{V_OMW}, v{V_OM2}
    v_mov_b32 v{V_OOB}, 0x80000000
    v_cmp_gt_u32 vcc, 2, v16
    v_lshrrev_b32 v20, 1, v{L}               ; row 0..31
    v_and_b32 v21, 1, v{L}
    v_cndmask_b32 v{V_OMWH}, v{V_OOB}, v{V_OM2}, vcc
    v_lshlrev_b32 v21, 4, v21
    s_lshl_b32 s{S_T1}, s{S_W}, 5
    s_add_u32 s{S_T1}, s{S_T1}, 1024
    v_add_u32 v21, s{S_T1}, v21              ; 1024 + 32w + 16(l&1)
    v_mul_u32_u24 v22, 9216, v20
    v_add_u32 v{V_OX}, v22, v21
    v_mul_u32_u24 v22, 1152, v20
    v_add_u32 v{V_OX2}, v22, v21
    s_waitcnt lgkmcnt(0)
    s_mul_i32 s{S_T0}, s{S_J}, 1152
    s_add_u32 s52, s52, s{S_T0}
    s_addc_u32 s53, s53, 0
    s_sub_u32 s{S_T1}, {576*9216}, s{S_T0}
    """)
    mk_srd(a, 8, 52, 53, f"s{S_T1}")
    a.e(f"""
    s_mul_i32 s{S_M0B}, s{S_W}, {RINGW}
    s_add_u32 s{S_M0B}, s{S_M0B}, {RING}
    s_mov_b32 s4, s8
    s_mov_b32 s5, s9
    s_mov_b32 s6, s10
    s_mov_b32 s7, s11
    s_mov_b32 s{S_OFF}, 0
    s_mov_b32 s{S_STEP}, {4*9216}
    """)
    a.e(f"""
    s_mul_i32 s{S_T0}, s{S_J}, {576*1152}
    s_add_u32 s56, s56, s{S_T0}
    s_addc_u32 s57, s57, 0
    """)
    mk_srd(a, 12, 56, 57, 576*1152)
    a.e(f"""
    s_mul_i32 s{S_T0}, s{S_J}, {72*1152}
    s_add_u32 s48, s48, s{S_T0}
    s_addc_u32 s49, s49, 0
    """)
    mk_srd(a, 16, 48, 49, 72*1152)
    mk_srd(a, 20, 62, 63, 0x10000000)
    a.e(f"""
    v_and_b32 v22, 31, v{L}
    v_lshlrev_b32 v22, 1, v22
    v_cmp_gt_u32 vcc, 32, v{L}
    v_and_b32 v23, 15, v{L}
    v_lshlrev_b32 v23, 1, v23
    v_cndmask_b32 v22, v{V_OOB}, v22, vcc
    v_cmp_gt_u32 vcc, 16, v{L}
    s_mul_i32 s{S_T0}, s{S_J}, 1152
    s_lshl_b32 s{S_T1}, s{S_W}, 8
    v_cndmask_b32 v23, v{V_OOB}, v23, vcc
    s_add_u32 s{S_T0}, s{S_T0}, s{S_T1}       ; (576j + 128w)*2
    """)
    mk_srd(a, 24, 54, 55, 4608*2)
    for t in range(4):
        a.e(f"buffer_load_ushort v{V_BI+t}, v22, s[24:27], s{S_T0} offen offset:{64*t}")
    a.e(f"""
    s_mul_i32 s{S_T0}, s{S_J}, 1152
    s_lshl_b32 s{S_T2}, s{S_W}, 5
    s_add_u32 s{S_T0}, s{S_T0}, s{S_T2}
    s_add_u32 s{S_T0}, s{S_T0}, 1024
    buffer_load_ushort v{V_BI+4}, v23, s[24:27], s{S_T0} offen
    s_cmp_eq_u32 s{S_J}, 0
    s_cselect_b32 s{S_T3}, {576*2}, 0
    """)
    mk_srd(a, 24, 58, 59, f"s{S_T3}")
    for t in range(4):
        a.e(f"buffer_load_ushort v{V_BI+5+t}, v22, s[24:27], s{S_T1} offen offset:{64*t}")
    a.e(f"""
    s_add_u32 s{S_T2}, s{S_T2}, 1024
    buffer_load_ushort v{V_BI+9}, v23, s[24:27], s{S_T2} offen
    """)
    for sl in range(3):
        a.e(f"""
        v_add_u32 v22, {32*sl}, v20
        v_mul_u32_u24 v23, 2731, v22
        v_lshrrev_b32 v23, 16, v23
        v_mul_u32_u24 v24, 24, v23
        v_sub_u32 v24, v22, v24
        v_mul_u32_u24 v23, 18, v23
        v_add_u32 v23, v23, v24
        v_mul_u32_u24 v23, 1152, v23
        v_add_u32 v23, v23, v21
        v_cmp_gt_u32 vcc, 18, v24
        s_nop 1
        v_cndmask_b32 v{V_OXW+sl}, v{V_OOB}, v23, vcc
        """)
    ST.stamp('mlp setup')
    X = 112
    a.e(f"""
    v_lshrrev_b32 v16, 4, v{L}               ; rr
    v_and_b32 v17, 15, v{L}                  ; i
    v_cmp_gt_u32 s[40:41], 8, v17
    s_lshl_b32 s{S_T0}, s{S_W}, 4
    v_add_u32 v18, s{S_T0}, v16              ; 16w + rr
    v_lshlrev_b32 v76, 3, v18
    v_add_u32 v76, {STAT}, v76
    v_mul_u32_u24 v18, 1152, v18
    v_lshl_add_u32 v72, v17, 4, v18
    s_mov_b32 s42, {hexf(1.0/576)}
    """)
    for q in range(4):
        for p in range(5):
            a.e(f"ds_read_b128 {vr(X+(q*5+p)*4,4)}, v72 offset:{XH + q*4608 + p*256}")
        if q == 1: a.e("s_waitcnt lgkmcnt(0)")
    wait_cnt(a, V_CNT, V_T, C_STAT, 4)
    ST.stamp('stats ok')
    for q in range(4):
        a.e(f"ds_read_b64 {vr(56+2*q,2)}, v76 offset:{32*q}")
    a.e("s_waitcnt lgkmcnt(0)")
    for q in range(4):
        S2 = 56 + 2*q
        a.e(f"v_mul_f32 v{S2}, s42, v{S2}")
    for q in range(4):
        S2 = 56 + 2*q
        a.e(f"v_mul_f32 v{64+q}, v{S2}, v{S2}")
    for q in range(4):
        S2 = 56 + 2*q
        a.e(f"v_fma_f32 v{S2+1}, v{S2+1}, s42, -v{64+q}")
    for q in range(4):
        S2 = 56 + 2*q
        a.e(f"v_max_f32 v{S2+1}, 0, v{S2+1}")
    for q in range(4):
        S2 = 56 + 2*q
        a.e(f"v_add_f32 v{S2+1}, {hexf(1e-5)}, v{S2+1}")
    for q in range(4):
        S2 = 56 + 2*q
        a.e(f"v_rsq_f32 v{S2+1}, v{S2+1}")
    a.e("s_nop 0")
    for q in range(4):
        S2 = 56 + 2*q
        a.e(f"v_mul_f32 v{S2}, v{S2}, v{S2+1}")
    for q in range(4):
        S2 = 56 + 2*q
        a.e(f"v_sub_f32 v{S2}, 0, v{S2}")
    F0 = 16
    for q in range(4):
        xq = X + q*20; S2 = 56 + 2*q
        for i in range(20):
            a.e(f"v_lshlrev_b32 v{F0+2*i}, 16, v{xq+i}\nv_and_b32 v{F0+2*i+1}, 0xffff0000, v{xq+i}")
        for i in range(40):
            a.e(f"v_fma_f32 v{F0+i}, v{F0+i}, v{S2+1}, v{S2}")
        for i in range(20):
            a.e(f"v_cvt_pk_bf16_f32 v{xq+i}, v{F0+2*i}, v{F0+2*i+1}")
    ST.stamp('LN regs')
    wait_cnt(a, V_CNT, V_T, C_P, 4)
    ST.stamp('C_P ok')
    for ph in range(2):
        for s_ in dma_regular(0, ph, V_OM, V_OX): a.e(s_)
    ST.stamp('slab0 iss')
    for q in range(4):
        xq = X + q * 20
        for p in range(4):
            a.e(f"ds_write_b128 v72, {vr(xq+4*p,4)} offset:{XH + q*4608 + p*256}")
        a.e(f"s_mov_b64 exec, s[40:41]\nds_write_b128 v72, {vr(xq+16,4)} offset:{XH + q*4608 + 1024}\ns_mov_b64 exec, -1")
    arrive(a, V_CNT, V_ONE, C_Y)
    ST.stamp('Y written')
    for ph in range(2):
        for s_ in dma_regular(1, ph, V_OM, V_OX): a.e(s_)
    ST.stamp('LN done')

    def init_acc(bi):
        for t in range(4):
            a.e(f"v_mov_b32 v{SETA[0]+4*t}, v{bi+t}")
            for i in range(1, 4): a.e(f"v_mov_b32 v{SETA[0]+4*t+i}, 0")
        a.e(f"v_mov_b32 v{AX}, v{bi+4}")
        for i in range(1, 4): a.e(f"v_mov_b32 v{AX+i}, 0")
        a.e(f"""
        v_mov_b32 v{V_T}, 0x3f80
        v_cmp_gt_u32 vcc, 32, v{L}
        v_mov_b32 v{SETB[0]+1}, 0
        v_mov_b32 v{SETB[0]+2}, 0
        v_cndmask_b32 v{SETB[0]}, 0, v{V_T}, vcc
        v_mov_b32 v{SETB[0]+3}, 0
        v_cmp_gt_u32 vcc, 16, v{L}
        v_mov_b32 v{BX+1}, 0
        v_mov_b32 v{BX+2}, 0
        v_cndmask_b32 v{BX}, 0, v{V_T}, vcc
        v_mov_b32 v{BX+3}, 0
        s_nop 1
        """)
        for t in range(4):
            for rt in range(2):
                a.e(f"v_mfma_f32_32x32x16_bf16 {vr(acc(t,rt),16)}, {vr(SETA[0]+4*t,4)}, {vr(SETB[0],4)}, 0")
        for rt in range(2):
            for rh in range(2):
                a.e(f"v_mfma_f32_16x16x32_bf16 {vr(accx(rt,rh),4)}, {vr(AX,4)}, {vr(BX,4)}, 0")

    def setup_a(perm):
        a.e(f"""
        v_lshrrev_b32 v16, 5, v{L}               ; hf
        v_bfe_u32 v17, v{L}, 4, 1                ; chalf
        v_bfe_u32 v18, v{L}, 2, 2                ; r
        v_and_b32 v19, 3, v{L}                   ; c
        v_lshl_add_u32 v20, v16, {2 if perm else 3}, v18
        v_lshlrev_b32 v20, 8, v20
        v_lshl_add_u32 v20, v17, 5, v20
        v_lshl_add_u32 v20, v19, 3, v20
        v_add_u32 v20, s{S_M0B}, v20
        """)
        for t in range(4):
            a.e(f"v_xor_b32 v21, {t}, v18\nv_lshl_add_u32 v{V_A+t}, v21, 6, v20")
        if perm:
            a.e(f"v_lshlrev_b32 v21, 4, v16\nv_lshl_add_u32 v21, v17, 2, v21\nv_add_u32 v21, v21, v18")
        else:
            a.e(f"v_lshrrev_b32 v21, 4, v{L}\nv_lshl_add_u32 v21, v21, 3, v18")
        a.e(f"""
        v_lshlrev_b32 v21, 5, v21
        v_lshl_add_u32 v21, v19, 3, v21
        v_add_u32 v{V_AX}, s{S_M0B}, v21
        """)
    def setup_b_x():
        a.e(f"""
        v_and_b32 v16, 31, v{L}
        v_mul_u32_u24 v17, 1152, v16
        v_bfe_u32 v18, v16, 1, 3
        v_lshrrev_b32 v19, 5, v{L}
        """)
        for b in range(4):
            a.e(f"v_add_u32 v20, {2*b}, v19\nv_xor_b32 v20, v20, v18\nv_lshl_add_u32 v{V_B+b}, v20, 4, v17")
        a.e(f"""
        v_and_b32 v16, 15, v{L}
        v_mul_u32_u24 v17, 1152, v16
        v_bfe_u32 v18, v16, 1, 3
        v_lshrrev_b32 v19, 4, v{L}
        """)
        for e in range(2):
            a.e(f"v_add_u32 v20, {4*e}, v19\nv_xor_b32 v20, v20, v18\nv_lshl_add_u32 v{V_BX+e}, v20, 4, v17")
    def setup_b_h(base):
        a.e(f"""
        v_lshlrev_b32 v{V_B}, 4, v{L}
        v_add_u32 v{V_B}, {base}, v{V_B}
        v_lshrrev_b32 v16, 5, v{L}
        v_mul_u32_u24 v16, {KS}, v16
        v_bfe_u32 v17, v{L}, 4, 1
        v_lshl_add_u32 v16, v17, 9, v16
        v_and_b32 v17, 15, v{L}
        v_lshl_add_u32 v16, v17, 4, v16
        v_add_u32 v{V_BX}, {base}, v16
        """)
    setup_a(False)
    setup_b_x()
    a.e("s_waitcnt vmcnt(18)")
    init_acc(V_BI)
    wait_cnt(a, V_CNT, V_T, C_Y, 4)
    a.e("s_waitcnt vmcnt(9)")
    ST.stamp('G1 start')

    def run_gemm(G, vom, vox, tag, next_dma0, next_dma1, switch, hook=None):
        for s in G.reads_main(0, 0, 0, 0): a.e(s)
        a.e(f"s_mov_b32 s{S_IT}, {5 if NO_MLP else 8}")
        if NO_MLP: a.e(f"s_branch {tag}_SKIP")
        a.raw(".p2align 6")
        a.label(f"{tag}_LOOP")
        for d in range(2):
            G.dstep(d, 2*d, dma_regular(d, 0, vom, vox), dma_regular(d, 1, vom, vox), 9, 9)
        if hook: hook()
        if asmlib.STAMPS:
            for itv in (7, 5, 3, 1):
                LS = a.newlabel("ITS")
                a.e(f"s_cmp_lg_u32 s{S_IT}, {itv}\ns_cbranch_scc1 {LS}")
                ST.stamp(f"{tag} it{8-itv}")
                a.label(LS)
        G.advance()
        a.e(f"""
        s_sub_u32 s{S_IT}, s{S_IT}, 1
        s_cmp_lg_u32 s{S_IT}, 0
        s_cbranch_scc1 {tag}_LOOP
        """)
        if NO_MLP:
            a.label(f"{tag}_SKIP")
            if hook: hook()
        switch()
        G.dstep(0, 0, next_dma0(0), next_dma1(0), 9, 9)
        G.dstep(1, 2, next_dma0(1), next_dma1(1), 9, 9, next_reads=False)

    G1 = GemmGen(a, 'x')
    def sw1():
        a.e(f"""
        s_mov_b32 s4, s12
        s_mov_b32 s5, s13
        s_mov_b32 s6, s14
        s_mov_b32 s7, s15
        s_mov_b32 s{S_OFF}, 0
        s_mov_b32 s{S_STEP}, {4*1152}
        """)
    run_gemm(G1, V_OM, V_OX, "G1", lambda b: dma_regular(b, 0, V_OM2, V_OX2), lambda b: dma_regular(b, 1, V_OM2, V_OX2), sw1)
    arrive(a, V_CNT, V_ONE, C_G1)
    ST.stamp('G1 end')
    a.e(f"""
    s_mov_b32 s44, {hexf(GC1)}
    s_mov_b32 s45, {hexf(GC1)}
    v_mov_b32 v30, {hexf(GC2)}
    v_mov_b32 v31, {hexf(GC2)}
    v_and_b32 v16, 31, v{L}
    v_lshlrev_b32 v16, 2, v16
    v_add_u32 v16, {GBUF}, v16
    v_and_b32 v17, 15, v{L}
    v_lshlrev_b32 v17, 2, v17
    v_add_u32 v17, {GBUF}, v17
    ds_read_b32 v{V_G}, v16
    ds_read_b32 v{V_G+1}, v16 offset:128
    ds_read_b32 v{V_G+2}, v17
    ds_read_b32 v{V_G+3}, v17 offset:64
    ds_read_b32 v{V_G+4}, v17 offset:128
    ds_read_b32 v{V_G+5}, v17 offset:192
    s_nop 7
    """)
    def gelu_group(base, npairs, dst):
        for p0 in range(0, npairs, 2):
            ps = [p0, p0+1]
            for n, p in enumerate(ps):
                a.e(f"v_pk_mul_f32 {vr(16+4*n,2)}, {vr(base+2*p,2)}, {vr(base+2*p,2)}")
            for n, p in enumerate(ps):
                a.e(f"v_pk_fma_f32 {vr(16+4*n,2)}, {vr(16+4*n,2)}, s[44:45], v[30:31]")
            for n, p in enumerate(ps):
                a.e(f"v_pk_mul_f32 {vr(16+4*n,2)}, {vr(16+4*n,2)}, {vr(base+2*p,2)}")
            for n, p in enumerate(ps):
                a.e(f"v_exp_f32 v{16+4*n}, v{16+4*n}\nv_exp_f32 v{17+4*n}, v{17+4*n}")
            for n, p in enumerate(ps):
                a.e(f"v_pk_add_f32 {vr(16+4*n,2)}, {vr(16+4*n,2)}, 1.0 op_sel_hi:[1,0]")
            for n, p in enumerate(ps):
                a.e(f"v_rcp_f32 v{16+4*n}, v{16+4*n}\nv_rcp_f32 v{17+4*n}, v{17+4*n}")
            for n, p in enumerate(ps):
                a.e(f"v_pk_mul_f32 {vr(16+4*n,2)}, {vr(16+4*n,2)}, {vr(base+2*p,2)}")
            for n, p in enumerate(ps):
                a.e(f"v_cvt_pk_bf16_f32 v{dst+p}, v{16+4*n}, v{17+4*n}")
    a.e(f"""
    v_lshlrev_b32 v24, 4, v{L}
    s_mul_i32 s{S_T0}, s{S_W}, {8*KS}
    v_add_u32 v24, s{S_T0}, v24                  ; vH
    v_bfe_u32 v25, v{L}, 4, 1
    v_lshlrev_b32 v25, 9, v25
    v_and_b32 v26, 15, v{L}
    v_lshl_add_u32 v25, v26, 4, v25
    v_lshrrev_b32 v26, 5, v{L}
    v_lshl_add_u32 v25, v26, 3, v25
    s_add_u32 s{S_T0}, s{S_W}, 32
    s_mul_i32 s{S_T0}, s{S_T0}, {KS}
    v_add_u32 v25, s{S_T0}, v25                  ; vHx
    """)
    first = True
    for t in range(4):
        for rt in range(2):
            gelu_group(acc(t, rt), 8, acc(t, rt))
            if first:
                wait_cnt(a, V_CNT, 26, C_G1, 4)
                first = False
            for h in range(2):
                a.e(f"ds_write_b128 v24, {vr(acc(t,rt)+4*h,4)} offset:{XH + (2*t+h)*KS + rt*1024}")
    for rt in range(2):
        for rh in range(2):
            gelu_group(accx(rt, rh), 2, accx(rt, rh))
            a.e(f"ds_write_b64 v25, {vr(accx(rt,rh),2)} offset:{XH + rt*1024 + rh*256}")
    arrive(a, V_CNT, V_ONE, C_H)
    ST.stamp('GELU done')
    for i in range(6):
        a.e(f"v_sub_f32 v{V_G+i}, 1.0, v{V_G+i}")
    init_acc(V_BI + 5)
    setup_a(True)
    setup_b_h(XH)
    wait_cnt(a, V_CNT, V_T, C_H, 4)
    ST.stamp('G2 start')
    G2 = GemmGen(a, 'h')
    def hook2():
        L1 = a.newlabel("G2H")
        a.e(f"s_cmp_lg_u32 s{S_IT}, 5\ns_cbranch_scc1 {L1}")
        arrive(a, V_CNT, V_ONE, C_G2, wait=False)
        a.label(L1)
    run_gemm(G2, V_OM2, V_OX2, "G2", lambda b: dma_wo(b, b, 0), lambda b: dma_wo(b, b, 1), lambda: None, hook=hook2)
    ST.stamp('G2 end')
    a.e("s_nop 15")
    for t in range(4):
        for rt in range(2):
            for i in range(0, 16, 2):
                a.e(f"v_pk_mul_f32 {vr(acc(t,rt)+i,2)}, {vr(acc(t,rt)+i,2)}, {vr(V_G,2)} op_sel:[0,{rt}] op_sel_hi:[1,{rt}]")
    for rt in range(2):
        for rh in range(2):
            for i in range(0, 4, 2):
                a.e(f"v_pk_mul_f32 {vr(accx(rt,rh)+i,2)}, {vr(accx(rt,rh)+i,2)}, {vr(V_G+2+2*rt,2)} op_sel:[0,{rh}] op_sel_hi:[1,{rh}]")
    setup_b_h(OPB)
    wait_cnt(a, V_CNT, V_T, C_O, 4)
    ST.stamp('O ready')
    a.e(f"ds_read_b32 v{V_T}, v{V_CNT} offset:{C_TAG}")
    for s in G2.reads_main(0, 0, 0, 0): a.e(s)
    a.e(f"s_waitcnt lgkmcnt(0)\nv_readfirstlane_b32 s47, v{V_T}")
    G2.dstep(0, 0, dma_wo(2, 0, 0), dma_wo(2, 0, 1), 9, 9)
    G2.dstep(1, 2, [], [], 9, 5)
    G2.dstep(0, 4, [], [], 0, None, next_reads=False)
    ST.stamp('wo done')
    a.e(f"""
    s_mul_i32 s{S_T0}, s3, 72
    s_mul_i32 s{S_T1}, s{S_W}, 18
    s_add_u32 s{S_T0}, s{S_T0}, s{S_T1}
    s_lshl_b32 s{S_T0}, s{S_T0}, 10
    s_add_u32 s{S_T0}, s{S_T0}, {WS_PART}
    v_lshlrev_b32 v{V_T}, 4, v{L}
    s_nop 7
    """)
    for pr in range(18):
        src = ACC + 8*pr; dst = 16 + 4*(pr % 8)
        for d in range(4):
            a.e(f"v_cvt_pk_bf16_f32 v{dst+d}, v{src+2*d}, v{src+2*d+1}")
        if pr and pr % 4 == 0: a.e(f"s_add_u32 s{S_T0}, s{S_T0}, 4096")
        if pr >= 8: a.e("s_nop 0")
        a.e(f"buffer_store_dwordx4 {vr(dst,4)}, v{V_T}, s[20:23], s{S_T0} offen offset:{(pr%4)*1024} sc1")
    a.e("s_waitcnt vmcnt(0)")
    a.e(f"""
    s_mov_b64 exec, 1
    ds_add_rtn_u32 v16, v{V_CNT}, v{V_ONE} offset:{C_S}
    s_waitcnt lgkmcnt(0)
    v_readfirstlane_b32 s{S_T0}, v16
    s_cmp_lg_u32 s{S_T0}, 3
    s_cbranch_scc1 M_NOFLAG
    s_lshl_b32 s{S_T0}, s{S_RB}, 7
    s_lshl_b32 s{S_T1}, s{S_J}, 2
    s_add_u32 s{S_T0}, s{S_T0}, s{S_T1}
    s_add_u32 s{S_T0}, s{S_T0}, {WS_XF}
    v_mov_b32 v16, s47
    v_mov_b32 v17, 0
    buffer_store_dword v16, v17, s[20:23], s{S_T0} offen sc1
    """)
    a.label("M_NOFLAG")
    a.e("s_mov_b64 exec, -1")
    ST.stamp('published')
    gen_reduce(a, ST, S_W)

KVB = [16, 32, 48, 64]
QA = lambda h: 80 + 6*h
QB = lambda h: 84 + 6*h
P = 104
S = [112, 128]
O = lambda h: 144 + 16*h
AV_16, AV_4, A_CNT, A_ONE, A_G = 2, 3, 11, 12, 212
NRM = 208
S_RT, S_KH, S_KV, S_LP, S_PASS = 31, 32, 33, 34, 46
XQ = OPB
KVD = 3

def gen_att(a, ST):
    L = V_LANE
    PA = 144
    a.e(f"""
    v_lshlrev_b32 v{AV_16}, 4, v{L}
    v_lshlrev_b32 v{AV_4}, 2, v{L}
    v_mov_b32 v{A_CNT}, {CNT}
    v_mov_b32 v{A_ONE}, 1
    v_lshrrev_b32 v15, 5, v{L}
    v_cmp_eq_u32 s[40:41], 0, v15
    s_mov_b32 s44, {hexf(CSCALE)}
    s_mov_b32 s45, {hexf(CSCALE)}
    """)
    mk_srd(a, 20, 62, 63, 0x10000000)
    for i in range(0, 12, 2):
        a.e(f"v_pk_mul_f32 {vr(PA+i,2)}, {vr(PA+i,2)}, s[44:45]")
        a.e(f"v_pk_mul_f32 {vr(PA+16+i,2)}, {vr(PA+16+i,2)}, s[44:45]")
    for d in range(4):
        a.e(f"v_cvt_pk_bf16_f32 v{QA(0)+d}, v{PA+2*d}, v{PA+2*d+1}")
    a.e(f"v_cvt_pk_bf16_f32 v{QB(0)}, v{PA+8}, v{PA+9}")
    W = 16
    for d in range(6):
        a.e(f"v_cvt_pk_bf16_f32 v{W+d}, v{PA+16+2*d}, v{PA+16+2*d+1}")
    a.e(f"""
    v_mov_b32 v{QA(1)}, v{W+1}
    v_mov_b32 v{QA(1)+2}, v{W+3}
    v_mov_b32 v{QB(1)}, v{W+5}
    v_mov_b32 v24, v{W+2}
    s_nop 0
    v_permlane32_swap_b32 v{W}, v{W+2}
    s_nop 1
    v_cndmask_b32 v{QA(1)+1}, v{W}, v{W+2}, s[40:41]
    v_permlane32_swap_b32 v24, v{W+4}
    s_nop 1
    v_cndmask_b32 v{QA(1)+3}, v24, v{W+4}, s[40:41]
    v_cndmask_b32 v{QB(0)}, 0, v{QB(0)}, s[40:41]
    v_cndmask_b32 v{QB(1)}, 0, v{QB(1)}, s[40:41]
    s_mul_i32 s{S_T0}, s{S_W}, 2560
    s_add_u32 s{S_T0}, s{S_T0}, {XQ}
    v_add_u32 v5, s{S_T0}, v{AV_16}
    v_add_u32 v6, s{S_T0}, v{AV_4}
    ds_write_b128 v5, {vr(QA(0),4)}
    ds_write_b32 v6, v{QB(0)} offset:1024
    ds_write_b128 v5, {vr(QA(1),4)} offset:1280
    ds_write_b32 v6, v{QB(1)} offset:2304
    s_xor_b32 s{S_T1}, s{S_W}, 2
    s_mul_i32 s{S_T1}, s{S_T1}, 2560
    s_add_u32 s{S_T1}, s{S_T1}, {XQ}
    v_add_u32 v5, s{S_T1}, v{AV_16}
    v_add_u32 v6, s{S_T1}, v{AV_4}
    """)
    arrive(a, A_CNT, A_ONE, C_ST)
    for h in range(2):
        norm_sum(a, NRM+h, [QA(h), QA(h)+1, QA(h)+2, QA(h)+3, QB(h)], 4)
    wait_cnt(a, A_CNT, 13, C_ST, 4)
    a.e(f"""
    ds_read_b128 {vr(QA(2),4)}, v5
    ds_read_b32 v{QB(2)}, v6 offset:1024
    ds_read_b128 {vr(QA(3),4)}, v5 offset:1280
    ds_read_b32 v{QB(3)}, v6 offset:2304
    v_mov_b32 v14, 0x00003f80
    """)
    for b in range(4):
        a.e(f"v_cndmask_b32 v{KVB[b]+13}, 0, v14, s[40:41]")
    a.e("s_waitcnt lgkmcnt(0)")
    for h in range(2, 4):
        norm_sum(a, NRM+h, [QA(h), QA(h)+1, QA(h)+2, QA(h)+3, QB(h)], 4)
    for h in range(4):
        a.e(f"v_sqrt_f32 v{NRM+h}, v{NRM+h}")
    ST.stamp('Q ready')
    a.e(f"s_cmp_lg_u32 s{S_W}, 3\ns_cbranch_scc1 A_KVW\ns_mov_b32 s39, 0x100000")
    a.label("A_KVP")
    a.e(f"""
    global_load_dword v13, v{AV_4}, s[60:61] sc1
    s_waitcnt vmcnt(0)
    v_cmp_eq_u32 vcc, 0, v13
    s_nop 1
    s_cmp_eq_u64 vcc, 0
    s_cbranch_scc1 A_KVD
    s_sleep 2
    s_sub_u32 s39, s39, 1
    s_cmp_lg_u32 s39, 0
    s_cbranch_scc1 A_KVP
    """)
    a.label("A_KVD")
    a.e(f"""
    s_mov_b64 exec, 1
    ds_write_b32 v{A_CNT}, v13 offset:{C_TAG}
    ds_add_u32 v{A_CNT}, v{A_ONE} offset:{C_KV}
    s_mov_b64 exec, -1
    """)
    a.label("A_KVW")
    wait_cnt(a, A_CNT, 13, C_KV, 1)
    ST.stamp('KV ok')
    a.e(f"""
    ds_read_b32 v4, v{A_CNT} offset:{C_TAG}
    s_mov_b32 s{S_T1}, {WS_KMAX}
    buffer_load_dword v13, v{AV_4}, s[20:23], s{S_T1} offen sc1
    s_lshl_b32 s{S_KV}, s{S_KH}, 17
    s_add_u32 s{S_KV}, s{S_KV}, {WS_KV}
    """)
    def kv_load(buf):
        b = KVB[buf]
        a.e(f"""
        buffer_load_dwordx4 {vr(b,4)}, v{AV_16}, s[20:23], s{S_KV} offen sc1
        buffer_load_dword v{b+12}, v{AV_4}, s[20:23], s{S_KV} offen offset:3072 sc1
        buffer_load_dwordx4 {vr(b+4,4)}, v{AV_16}, s[20:23], s{S_KV} offen offset:1024 sc1
        buffer_load_dwordx4 {vr(b+8,4)}, v{AV_16}, s[20:23], s{S_KV} offen offset:2048 sc1
        s_add_u32 s{S_KV}, s{S_KV}, 4096
        """)
    for b in range(KVD): kv_load(b)
    a.e(f"""
    v_and_b32 v8, 31, v{L}
    v_lshlrev_b32 v8, 2, v8
    s_lshl_b32 s{S_T0}, s{S_RT}, 7
    s_add_u32 s{S_T0}, s{S_T0}, {GBUF}
    v_add_u32 v{A_G+1}, s{S_T0}, v8
    s_waitcnt vmcnt({4*KVD}) lgkmcnt(0)
    v_readfirstlane_b32 s47, v4
    """)
    for pat in ["quad_perm:[1,0,3,2]", "quad_perm:[2,3,0,1]", "row_ror:4", "row_ror:8"]:
        a.e(f"v_max_f32_dpp v13, v13, v13 {pat} row_mask:0xf bank_mask:0xf\ns_nop 1")
    a.e(f"""
    ds_swizzle_b32 v14, v13 offset:{(16<<10)|0x1f}
    s_waitcnt lgkmcnt(0)
    v_max_f32 v13, v13, v14
    v_mov_b32 v14, v13
    s_nop 1
    v_permlane32_swap_b32 v13, v14
    s_nop 1
    v_max_f32 v13, v13, v14
    v_sqrt_f32 v13, v13
    s_nop 0
    v_mul_f32 v13, {hexf(1.0 + 2.0**-6)}, v13
    """)
    if FORCE_FB:
        a.e(f"v_add_f32 v13, 0x43000000, v13")
    def set_m(h, vm):
        a.e(f"""
        v_and_b32 v4, 0xffff0000, v{vm}
        v_sub_f32 v5, v{vm}, v4
        v_and_b32 v6, 0xffff0000, v5
        v_sub_f32 v5, v5, v6
        v_lshrrev_b32 v5, 16, v5
        v_lshrrev_b32 v4, 16, v4
        v_or_b32 v4, v4, v6
        v_cndmask_b32 v{QB(h)}, v4, v{QB(h)}, s[40:41]
        v_cndmask_b32 v{QB(h)+1}, 0, v5, s[40:41]
        """)
    for h in range(4):
        a.e(f"v_mul_f32 v7, v{NRM+h}, v13\nv_sub_f32 v7, 0, v7")
        set_m(h, 7)
    a.e(f"s_mov_b32 s{S_PASS}, 4")
    if PF:
        a.e(f"""
        s_load_dwordx2 s[56:57], s[0:1], 64      ; w2
        s_load_dwordx2 s[58:59], s[0:1], 32      ; wo
        s_load_dwordx2 s[42:43], s[0:1], 48      ; w1
        s_waitcnt lgkmcnt(0)
        s_mul_i32 s{S_T0}, s{S_J}, 1152
        s_add_u32 s42, s42, s{S_T0}
        s_addc_u32 s43, s43, 0
        s_sub_u32 s{S_T1}, {576*9216}, s{S_T0}
        s_mul_i32 s{S_T0}, s{S_J}, {576*1152}
        s_add_u32 s56, s56, s{S_T0}
        s_addc_u32 s57, s57, 0
        s_mul_i32 s{S_T0}, s{S_J}, {72*1152}
        s_add_u32 s58, s58, s{S_T0}
        s_addc_u32 s59, s59, 0
        """)
        mk_srd(a, 24, 42, 43, f"s{S_T1}")
        mk_srd(a, 48, 56, 57, 576*1152)
        mk_srd(a, 52, 58, 59, 72*1152)
        a.e(f"""
        s_and_b32 s{S_T0}, s{S_RB}, {NSH-1}
        s_lshl_b32 s{S_T0}, s{S_T0}, 6
        s_mul_i32 s{S_T1}, s{S_W}, {64*NSH}
        s_add_u32 s{S_T0}, s{S_T0}, s{S_T1}
        s_mov_b32 s{S_T2}, {(2**32 + 8)//9}
        """)
        for k in range(1):
            a.e(f"""
            s_add_u32 s{S_T1}, s{S_T0}, {2*64*NSH}
            v_add_u32 v4, s{S_T1}, v{L}
            v_min_u32 v4, 5183, v4
            v_mul_hi_u32 v5, v4, s{S_T2}
            v_mul_u32_u24 v6, 9, v5
            v_sub_u32 v4, v4, v6
            v_mul_u32_u24 v5, 9216, v5
            v_lshl_add_u32 v{221+k}, v4, 7, v5
            """)
        a.e(f"""
        s_and_b32 s{S_T0}, s{S_RB}, {NSH-1}
        s_lshl_b32 s{S_T0}, s{S_T0}, 6
        v_add_u32 v215, s{S_T0}, v{L}
        v_lshlrev_b32 v215, 7, v215
        s_mul_i32 s{S_T1}, s{S_W}, {64*NSH*128}
        v_add_u32 v214, s{S_T1}, v215
        """)

    def qk_a(n_s, h, buf, c="0"):
        return f"v_mfma_f32_32x32x16_bf16 {vr(S[n_s],16)}, {vr(KVB[buf],4)}, {vr(QA(h),4)}, 0"
    def qk_b(n_s, h, buf):
        return f"v_mfma_f32_32x32x8_bf16 {vr(S[n_s],16)}, {vr(KVB[buf]+12,2)}, {vr(QB(h),2)}, {vr(S[n_s],16)}"
    def pv(h, t, buf):
        return f"v_mfma_f32_32x32x16_bf16 {vr(O(h),16)}, {vr(KVB[buf]+4+4*t,4)}, {vr(P+4*t,4)}, {vr(O(h),16)}"
    def ec(s, g):
        b = S[s] + 4*g
        for i in range(4): a.e(f"v_exp_f32 v{b+i}, v{b+i}")
        a.e(f"v_cvt_pk_bf16_f32 v{P+2*g}, v{b}, v{b+1}")
        a.e(f"v_cvt_pk_bf16_f32 v{P+2*g+1}, v{b+2}, v{b+3}")

    a.label("A_MAIN")
    for i in range(8): a.e(f"v_mov_b32 v{P+i}, 0")
    for i in range(4): a.e(f"v_mov_b32 v{KVB[3]+8+i}, 0")
    a.e("s_nop 1")
    for h in range(4):
        a.e(f"v_mfma_f32_32x32x16_bf16 {vr(O(h),16)}, {vr(P,4)}, {vr(P,4)}, 0")
    a.e(f"s_waitcnt vmcnt({4*(KVD-1)})")
    ST.stamp('loop start')
    a.e(f"s_setprio {PPAT[3] if len(set(PPAT)) > 1 else PPAT[0]}")
    a.e(qk_a(0, 0, 0)); a.e(qk_b(0, 0, 0))
    a.e(f"s_mov_b32 s{S_LP}, {1 if NO_ATT else 8}")
    a.e("s_nop 15")
    a.raw(".p2align 6")
    a.label("ATT_LOOP")
    for kb in range(4):
        for h in range(4):
            n = kb*4 + h
            cur, nxt = n % 2, (n + 1) % 2
            nh, nbuf = (h + 1) % 4, (kb if h < 3 else (kb + 1) % 4)
            ph, pbuf = (h - 1) % 4, (kb if h > 0 else (kb - 1) % 4)
            if h == 0 and len(set(PPAT)) > 1 and PPAT[kb] != PPAT[kb-1]: a.e(f"s_setprio {PPAT[kb]}")
            if h == 3: a.e(f"s_waitcnt vmcnt({4*(KVD-1)})")
            a.e(qk_a(nxt, nh, nbuf))
            ec(cur, 0)
            a.e(pv(ph, 1, pbuf))
            if h == 0: kv_load((kb + KVD) % 4)
            if PF and h == 1:
                LP = a.newlabel("PFX"); LQ = a.newlabel("PFY"); LR = a.newlabel("PFZ")
                a.e(f"""
                s_cmp_lg_u32 s{S_W}, {kb}
                s_cbranch_scc1 {LP}
                s_cmp_lt_u32 s{S_LP}, 6
                s_cbranch_scc1 {LP}
                s_cmp_eq_u32 s{S_LP}, 8
                s_cbranch_scc0 {LQ}
                buffer_load_dword v216, v221, s[24:27], 0 offen
                s_branch {LP}
                """)
                a.label(LQ)
                if kb == 2:
                    a.e(f"""
                    s_cmp_eq_u32 s{S_LP}, 6
                    s_cbranch_scc0 {LR}
                    buffer_load_dword v216, v215, s[52:55], 0 offen
                    s_branch {LP}
                    """)
                    a.label(LR)
                a.e(f"""
                buffer_load_dword v216, v214, s[48:51], 0 offen
                v_add_u32 v214, {4*64*NSH*128}, v214
                """)
                a.label(LP)
            ec(cur, 1)
            a.e(qk_b(nxt, nh, nbuf))
            ec(cur, 2)
            a.e(pv(h, 0, kb))
            ec(cur, 3)
    a.e(f"""
    s_sub_u32 s{S_LP}, s{S_LP}, 1
    s_cmp_lg_u32 s{S_LP}, 0
    s_cbranch_scc1 ATT_LOOP
    """)
    a.e("s_nop 1")
    a.e(pv(3, 1, 3))
    a.e(f"ds_read_b32 v{A_G}, v{A_G+1}")
    a.e("s_waitcnt vmcnt(0)\ns_nop 15")
    a.e("s_setprio 0")
    ST.stamp('loop end')
    a.e(f"""
    v_min_f32 v4, v{O(0)+10}, v{O(1)+10}
    v_min_f32 v5, v{O(2)+10}, v{O(3)+10}
    v_min_f32 v4, v4, v5
    v_mov_b32 v5, {hexf(2.0**-90)}
    v_cmp_nge_f32 vcc, v4, v5
    s_nop 1
    s_and_b64 vcc, vcc, s[40:41]
    s_cmp_eq_u64 vcc, 0
    s_cbranch_scc1 A_CHKOK
    """)
    arrive(a, A_CNT, A_ONE, C_FB, wait=False)
    a.label("A_CHKOK")
    wait_cnt(a, A_CNT, 13, C_G2, 4)
    ST.stamp('G2 ok')
    a.e(f"""
    s_mul_i32 s{S_T0}, s{S_W}, 6144
    v_add_u32 v13, s{S_T0}, v{AV_16}
    s_xor_b32 s{S_T1}, s{S_W}, 2
    s_mul_i32 s{S_T1}, s{S_T1}, 6144
    v_add_u32 v14, s{S_T1}, v{AV_16}
    """)
    for n, h in enumerate([2, 3]):
        for qd in range(3):
            a.e(f"ds_write_b128 v13, {vr(O(h)+4*qd,4)} offset:{XH + n*3072 + qd*1024}")
    arrive(a, A_CNT, A_ONE, C_X)
    wait_cnt(a, A_CNT, 15, C_X, f"s{S_PASS}")
    a.e(f"""
    s_cmp_lg_u32 s{S_PASS}, 4
    s_cbranch_scc1 A_NOFB
    ds_read_b32 v15, v{A_CNT} offset:{C_FB}
    s_waitcnt lgkmcnt(0)
    v_readfirstlane_b32 s{S_T0}, v15
    s_cmp_eq_u32 s{S_T0}, 0
    s_cbranch_scc1 A_NOFB
    """)
    for h in range(4):
        a.e(f"v_mov_b32 v{NRM+h}, 0xff800000")
        a.e(f"v_cndmask_b32 v{QB(h)}, 0, v{QB(h)}, s[40:41]\nv_mov_b32 v{QB(h)+1}, 0")
    a.e(f"""
    s_lshl_b32 s{S_KV}, s{S_KH}, 17
    s_add_u32 s{S_KV}, s{S_KV}, {WS_KV}
    s_mov_b32 s{S_LP}, 32
    """)
    a.label("A_MAXL")
    kv_load(0)
    a.e("s_waitcnt vmcnt(0)")
    for h in range(4):
        a.e(qk_a(0, h, 0)); a.e(qk_b(0, h, 0))
        a.e("s_nop 15\ns_nop 7")
        for i in range(0, 16, 2):
            a.e(f"v_max3_f32 v{NRM+h}, v{S[0]+i}, v{S[0]+i+1}, v{NRM+h}")
    a.e(f"""
    s_sub_u32 s{S_LP}, s{S_LP}, 1
    s_cmp_lg_u32 s{S_LP}, 0
    s_cbranch_scc1 A_MAXL
    """)
    for h in range(4):
        a.e(f"""
        v_mov_b32 v4, v{NRM+h}
        s_nop 1
        v_permlane32_swap_b32 v{NRM+h}, v4
        s_nop 1
        v_max_f32 v{NRM+h}, v{NRM+h}, v4
        """)
    a.e(f"""
    s_mul_i32 s{S_T0}, s{S_W}, 6144
    v_add_u32 v13, s{S_T0}, v{AV_4}
    s_xor_b32 s{S_T1}, s{S_W}, 2
    s_mul_i32 s{S_T1}, s{S_T1}, 6144
    v_add_u32 v14, s{S_T1}, v{AV_4}
    """)
    for h in range(4):
        a.e(f"ds_write_b32 v13, v{NRM+h} offset:{XH + 256*h}")
    arrive(a, A_CNT, A_ONE, C_M)
    wait_cnt(a, A_CNT, 15, C_M, 4)
    for h in range(4):
        a.e(f"ds_read_b32 v{4+h if False else 96+0+0 if False else 217+h}, v14 offset:{XH + 256*((h+2)%4)}")
    a.e("s_waitcnt lgkmcnt(0)")
    for h in range(4):
        a.e(f"v_max_f32 v7, v{NRM+h}, v{217+h}\nv_sub_f32 v7, 0, v7")
        set_m(h, 7)
    arrive(a, A_CNT, A_ONE, C_M)
    wait_cnt(a, A_CNT, 15, C_M, 8)
    a.e(f"""
    s_lshl_b32 s{S_KV}, s{S_KH}, 17
    s_add_u32 s{S_KV}, s{S_KV}, {WS_KV}
    s_mov_b32 s{S_PASS}, 8
    """)
    for b in range(KVD): kv_load(b)
    a.e("s_branch A_MAIN")
    a.label("A_NOFB")
    a.e(f"""
    s_xor_b32 s{S_T1}, s{S_W}, 2
    s_mul_i32 s{S_T1}, s{S_T1}, 6144
    v_add_u32 v14, s{S_T1}, v{AV_16}
    """)
    for n in range(2):
        for qd in range(3):
            a.e(f"ds_read_b128 {vr(S[0]+ (n*12) + 4*qd,4)}, v14 offset:{XH + n*3072 + qd*1024}")
    a.e("s_waitcnt lgkmcnt(0)")
    for n in range(2):
        for i in range(12):
            a.e(f"v_add_f32 v{16+12*n+i}, v{O(n)+i}, v{S[0]+12*n+i}")
    a.e(f"""
    s_lshl_b32 s{S_T0}, s{S_RT}, 10
    s_add_u32 s{S_T0}, s{S_T0}, {OPB}
    v_add_u32 v13, s{S_T0}, v{AV_16}
    s_mul_i32 s{S_T1}, s{S_KH}, {3*KS}
    v_add_u32 v13, s{S_T1}, v13
    """)
    for n in range(2):
        b = 16 + 12*n
        a.e(f"""
        v_mov_b32 v4, v{b+10}
        v_mov_b32 v5, v{b+10}
        s_nop 1
        v_permlane32_swap_b32 v4, v5
        s_nop 1
        v_rcp_f32 v5, v4
        s_nop 0
        v_mul_f32 v5, v5, v{A_G}
        """)
        for i in range(10):
            a.e(f"v_mul_f32 v{b+i}, v5, v{b+i}")
        a.e(f"""
        v_cvt_pk_bf16_f32 v40, v{b}, v{b+1}
        v_cvt_pk_bf16_f32 v41, v{b+2}, v{b+3}
        v_cvt_pk_bf16_f32 v42, v{b+4}, v{b+5}
        v_cvt_pk_bf16_f32 v43, v{b+6}, v{b+7}
        v_cvt_pk_bf16_f32 v44, v{b+8}, v{b+9}
        v_mov_b32 v45, 0
        v_cndmask_b32 v44, 0, v44, s[40:41]
        """)
        for g in range(3):
            x = 3*n + g
            a.e(f"ds_write_b64 v13, {vr(40+2*g,2)} offset:{(x>>1)*KS + 8*(x&1)}")
    arrive(a, A_CNT, A_ONE, C_O)
    ST.stamp('O written')
    a.e(f"s_add_u32 s{S_W}, s{S_W}, 4")
    gen_reduce(a, ST, S_W)

def gen_merged(a):
    kernel_header(a, KNAME)
    ST = Stamper(a, 1)
    a.e(f"""
    s_cmp_ge_u32 s2, 256
    s_cbranch_scc1 K_END
    """)
    if XMAP == 0:
        a.e(f"s_lshr_b32 s{S_RB}, s2, 3\ns_and_b32 s{S_J}, s2, 7")
    elif XMAP == 1:
        a.e(f"""
        s_and_b32 s{S_J}, s2, 3
        s_lshl_b32 s{S_J}, s{S_J}, 1
        s_bfe_u32 s{S_T0}, s2, 0x10003
        s_or_b32 s{S_J}, s{S_J}, s{S_T0}
        s_bfe_u32 s{S_RB}, s2, 0x10002
        s_lshl_b32 s{S_RB}, s{S_RB}, 4
        s_lshr_b32 s{S_T0}, s2, 4
        s_or_b32 s{S_RB}, s{S_RB}, s{S_T0}
        """)
    elif XMAP == 2:
        a.e(f"""
        s_and_b32 s{S_J}, s2, 1
        s_lshl_b32 s{S_J}, s{S_J}, 2
        s_bfe_u32 s{S_T0}, s2, 0x20003
        s_or_b32 s{S_J}, s{S_J}, s{S_T0}
        s_bfe_u32 s{S_RB}, s2, 0x20001
        s_lshl_b32 s{S_RB}, s{S_RB}, 3
        s_lshr_b32 s{S_T0}, s2, 5
        s_or_b32 s{S_RB}, s{S_RB}, s{S_T0}
        """)
    a.e(f"""
    s_lshl_b32 s3, s{S_RB}, 3
    s_or_b32 s3, s3, s{S_J}
    v_lshrrev_b32 v2, 6, v0
    v_and_b32 v{V_LANE}, 63, v0
    s_nop 0
    v_readfirstlane_b32 s{S_W}, v2
    """)
    ST.stamp('start'); ST.rstamp(30)
    gen_entry(a, ST)
    n0 = ST.n
    a.e(f"s_cmp_ge_u32 s{S_W}, 4\ns_cbranch_scc1 K_ATT")
    gen_pre_mlp(a, ST)
    gen_mlp(a, ST)
    ST.stamp('end'); ST.rstamp(31)
    if asmlib.STAMPS: a.e("s_waitcnt vmcnt(0)")
    ST.flush(62, 63, S_W, vtmp=200)
    a.e("s_endpgm")
    mlp_names = list(ST.names)
    a.label("K_ATT")
    ST.n = n0; ST.names = ST.names[:n0]
    a.e(f"s_sub_u32 s{S_W}, s{S_W}, 4")
    gen_proj_att(a, ST)
    gen_att(a, ST)
    ST.stamp('end'); ST.rstamp(31)
    if asmlib.STAMPS: a.e("s_waitcnt vmcnt(0)")
    ST.flush(62, 63, S_W, vtmp=200)
    a.label("K_END")
    a.e("s_endpgm")
    return mlp_names, list(ST.names)

def build():
    a = Asm()
    hdr = open("gated_mix__grouped_kv_mqa__mixer_channel_mlp__prompt.s.ref").read().split("\n")
    top = [l for l in hdr if l.startswith(";") and "@launch" not in l and "Override launch" not in l and "grid=ceil" not in l]
    a.raw('.amdgcn_target "amdgcn-amd-amdhsa--gfx950"')
    a.raw(".text")
    names = gen_merged(a)
    txt = "\n".join(top) + f"\n; @launch grid=(256,1,1) block=(512,1,1) lds={LDS_BYTES}\n" + a.text() + '.section .rodata,"a"\n.p2align 6\n' + kernel_desc(KNAME, 256)
    return txt, names
if __name__ == "__main__":
    import sys
    asmlib.STAMPS = bool(os.environ.get("STAMPS"))
    out = sys.argv[1] if len(sys.argv) > 1 else "m.s"
    txt, names = build()
    open(out, "w").write(txt)
    open(out + ".mn", "w").write(",".join(names[0])); open(out + ".an", "w").write(",".join(names[1]))
    print("wrote", out)
```

```python
from asmlib import *
import asmlib
import math, os
NO_ATT = bool(os.environ.get('NO_ATT')); NO_MLP = bool(os.environ.get('NO_MLP'))
PRIO_ATT = int(os.environ.get('PRIO_ATT', '0')); PRIO_MLP = int(os.environ.get('PRIO_MLP', '0'))
FORCE_FB = bool(os.environ.get('FORCE_FB'))
PPAT = [int(c) for c in os.environ.get('PPAT', '0000')]
GELU_PRIO = int(os.environ.get('GELU_PRIO', '0'))

KNAME = "gated_mix__grouped_kv_mqa__mixer_channel_mlp__prompt_kernel"
LOG2E = math.log2(math.e)
CSCALE = LOG2E / math.sqrt(18.0)
GC2 = -2.0 * math.sqrt(2.0 / math.pi) * LOG2E
GC1 = GC2 * 0.044715

WS_KV   = 0x000000
WS_KMAX = 0x040000
WS_TAG  = 0x041000
WS_XF   = 0x042000
WS_PART = 0x100000

KS = 2080
XH = 0
RING = 36 * KS
RINGW = 18432
SLAB = 9216
OPB = RING + 4 * RINGW
CNT = OPB + 6 * KS
GW = CNT + 80
GBUF = GW + 1152
STAT = GBUF + 256
LDS_BYTES = STAT + 512
PBUF = 27648
SROW = 192
STG = OPB
C_Y, C_G1, C_H, C_G2, C_X, C_O, C_S, C_FB, C_M, C_TAG = 0, 4, 8, 12, 16, 20, 24, 28, 32, 36
C_PW, C_P, C_ST, C_STAT, C_KV, C_XF = 40, 44, 48, 52, 56, 60
C_XL, C_KVD, C_KVS = 64, 68, 72
XMAP = int(os.environ.get('XMAP', '0'))

S_RB, S_J, S_W = 28, 29, 30
S_OFF, S_STEP, S_M0B, S_IT = 31, 32, 33, 34
S_T0, S_T1, S_T2, S_T3 = 35, 36, 37, 38
S_RT, S_KH, S_KV, S_LP, S_PASS = 31, 32, 33, 34, 46
V_LANE = 1

def mk_srd(a, s, lo, hi, size):
    a.e(f"""
    s_mov_b32 s{s}, s{lo}
    s_and_b32 s{s+1}, s{hi}, 0xffff
    s_mov_b32 s{s+2}, {size}
    s_mov_b32 s{s+3}, 0x00020000
    """)
def arrive(a, vcnt, vone, off, wait=True):
    if wait: a.e("s_waitcnt lgkmcnt(0)")
    a.e(f"""
    s_mov_b64 exec, 1
    ds_add_u32 v{vcnt}, v{vone} offset:{off}
    s_mov_b64 exec, -1
    """)
def wait_cnt(a, vcnt, vtmp, off, target):
    L = a.newlabel("WAITC"); D = a.newlabel("WAITD")
    a.e("s_mov_b32 s39, 0x40000")
    a.label(L)
    a.e(f"""
    ds_read_b32 v{vtmp}, v{vcnt} offset:{off}
    s_waitcnt lgkmcnt(0)
    v_readfirstlane_b32 s{S_T3}, v{vtmp}
    s_cmp_ge_u32 s{S_T3}, {target}
    s_cbranch_scc1 {D}
    s_sleep 1
    s_sub_u32 s39, s39, 1
    s_cmp_lg_u32 s39, 0
    s_cbranch_scc1 {L}
    """)
    a.label(D)

KVW = RING + 2*PBUF
TOUCH = int(os.environ.get('TOUCH', '1'))
PF = int(os.environ.get('PF', '1'))
CODEPF = int(os.environ.get('CODEPF', '1'))
NSH = 16 if XMAP == 1 else (8 if XMAP == 2 else 32)
def gen_entry(a, ST):
    a.e(f"""
    s_load_dwordx4 s[48:51], s[0:1], 0       ; x, wq
    s_load_dwordx4 s[52:55], s[0:1], 16
    s_load_dwordx2 s[56:57], s[0:1], 80      ; gate_w
    s_load_dwordx4 s[60:63], s[0:1], 96
    """)

def zero_counters(a):
    a.e(f"""
    v_mov_b32 v3, {CNT}
    v_mov_b32 v20, 0
    v_mov_b32 v21, 0
    v_mov_b32 v22, 0
    v_mov_b32 v23, 0
    ds_write_b128 v3, v[20:23]
    ds_write_b128 v3, v[20:23] offset:16
    ds_write_b128 v3, v[20:23] offset:32
    ds_write_b128 v3, v[20:23] offset:48
    ds_write_b128 v3, v[20:23] offset:64
    """)

def gen_x_issue(a, ST):
    L = V_LANE
    a.e(f"s_mov_b32 s40, {(2**32 + 71)//72}")
    for i in range(9):
        a.e(f"""
        v_add_u32 v26, {64*i}, v{L}
        v_mul_hi_u32 v27, v26, s40
        v_mul_u32_u24 v3, 72, v27
        v_sub_u32 v26, v26, v3             ; pos
        v_lshrrev_b32 v28, 1, v27
        v_xor_b32 v28, v28, v26
        v_bfi_b32 v28, 7, v28, v26
        v_mul_u32_u24 v27, 1152, v27
        v_lshl_add_u32 v{4+i}, v28, 4, v27
        v_xor_b32 v28, 4, v28
        v_lshl_add_u32 v{30+i}, v28, 4, v27
        """)
    a.e(f"""
    s_mul_i32 s45, s{S_RB}, {64*1152}
    s_mul_i32 s46, s{S_W}, 18432
    s_add_u32 s45, s45, s46
    s_waitcnt lgkmcnt(0)
    s_add_u32 s42, s48, s45
    s_addc_u32 s43, s49, 0
    """)
    mk_srd(a, 24, 42, 43, 18432)
    a.e("s_mov_b32 s44, 9216")
    for h in range(2):
        for i in range(9):
            a.e(f"""
            s_add_u32 m0, s46, {XH + h*9216 + i*1024}
            s_nop 0
            buffer_load_dwordx4 v{(4 if h == 0 else 30)+i}, s[24:27], {'0' if h == 0 else 's44'} offen lds
            """)
    zero_counters(a)
    a.e(f"""
    s_cmp_lg_u32 s{S_W}, 3
    s_cbranch_scc1 E_NOGW
    v_lshlrev_b32 v3, 4, v{L}
    s_mov_b32 m0, {GW}
    s_nop 0
    global_load_lds_dwordx4 v3, s[56:57]
    s_mov_b64 exec, 0xff
    global_load_lds_dwordx4 v3, s[56:57] offset:1024
    s_mov_b64 exec, -1
    v_mov_b32 v4, 0x3f803f80
    v_mov_b32 v5, 0x3f803f80
    v_mov_b32 v6, 0x3f803f80
    v_mov_b32 v7, 0x3f803f80
    v_add_u32 v3, {XH + 73728}, v3
    ds_write_b128 v3, v[4:7]
    s_mov_b64 exec, 0xff
    ds_write_b128 v3, v[4:7] offset:1024
    s_mov_b64 exec, -1
    """)
    a.label("E_NOGW")
    a.e("s_waitcnt lgkmcnt(0)\ns_barrier")
    ST.stamp('x iss')

def xb_addr(a, L, rt_sgpr, dst):
    a.e(f"v_lshrrev_b32 v26, 5, v{L}\nv_and_b32 v27, 31, v{L}")
    if rt_sgpr is None:
        a.e("v_mul_u32_u24 v28, 1152, v27")
    else:
        a.e(f"s_lshl_b32 s36, s{rt_sgpr}, 5\nv_add_u32 v28, s36, v27\nv_mul_u32_u24 v28, 1152, v28")
    a.e("v_bfe_u32 v29, v27, 1, 3")
    for b in range(4):
        a.e(f"v_add_u32 v30, {2*b}, v26\nv_xor_b32 v30, v30, v29\nv_lshl_add_u32 v{dst+b}, v30, 4, v28")

def norm_sum(a, dst, regs, tmp):
    a.e(f"v_mov_b32 v{dst}, 0")
    for r in regs:
        a.e(f"v_dot2_f32_bf16 v{dst}, v{r}, v{r}, v{dst}")
    a.e(f"""
    s_nop 3
    v_mov_b32 v{tmp}, v{dst}
    s_nop 1
    v_permlane32_swap_b32 v{dst}, v{tmp}
    s_nop 1
    v_add_f32 v{dst}, v{dst}, v{tmp}
    """)

def gen_pre_mlp(a, ST):
    L = V_LANE
    BF, AF, SA = 16, 40, 112
    gen_x_issue(a, ST)
    a.e(f"""
    v_mov_b32 v84, {CNT}
    v_mov_b32 v85, 1
    s_setprio 3
    """)
    a.e(f"s_and_b32 s37, s{S_W}, 1")
    xb_addr(a, L, 37, 4)
    a.e(f"""
    v_and_b32 v27, 31, v{L}
    v_cmp_eq_u32 s[46:47], 1, v27
    v_mov_b32 v28, {GW}
    v_mov_b32 v29, {XH + 73728}
    v_lshrrev_b32 v26, 5, v{L}
    v_cndmask_b32 v28, v28, v29, s[46:47]
    v_lshl_add_u32 v82, v26, 4, v28
    v_bfe_u32 v27, v{L}, 4, 1
    v_bfe_u32 v28, v{L}, 2, 2
    v_and_b32 v29, 3, v{L}
    v_lshl_add_u32 v30, v26, 3, v28          ; 8hf + r
    v_mul_u32_u24 v31, 40, v30
    v_lshl_add_u32 v31, v27, 5, v31
    v_lshl_add_u32 v31, v29, 3, v31
    v_add_u32 v77, {KVW}, v31
    v_lshlrev_b32 v78, 4, v{L}
    v_lshlrev_b32 v79, 2, v{L}
    v_mov_b32 v80, 0
    v_mov_b32 v81, 0
    """)
    mk_srd(a, 20, 62, 63, 0x10000000)
    a.e("s_waitcnt vmcnt(0)")
    arrive(a, 84, 85, C_XL, wait=False)
    wait_cnt(a, 84, 3, C_XL, 4)
    ST.stamp('x landed')
    def chain(kind):
        def rd(s):
            st = s % 4
            r = [f"ds_read_b128 {vr(BF+4*st,4)}, v{4+(s&3)} offset:{128*(s>>2)}"]
            if kind == 0: r.append(f"ds_read_b128 {vr(AF+4*st,4)}, v82 offset:{32*s}")
            return r
        n = 2 if kind == 0 else 1
        for s_ in range(3):
            for x in rd(s_): a.e(x)
        for s_ in range(36):
            issued = min(36, s_ + 3)
            a.e(f"s_waitcnt lgkmcnt({n*(issued - s_ - 1)})")
            st = s_ % 4
            c = "0" if s_ == 0 else vr(SA,16)
            A_ = vr(AF+4*st,4) if kind == 0 else vr(BF+4*st,4)
            a.e(f"v_mfma_f32_32x32x16_bf16 {vr(SA,16)}, {A_}, {vr(BF+4*st,4)}, {c}")
            if s_ + 3 < 36:
                for x in rd(s_ + 3): a.e(x)
        a.e(f"""
        v_and_b32 v26, 31, v{L}
        s_lshl_b32 s36, s37, 5
        v_add_u32 v27, s36, v26                   ; row
        """)
        if kind == 0:
            a.e(f"""
            v_lshlrev_b32 v28, 2, v27
            v_add_u32 v28, {GBUF}, v28
            v_lshlrev_b32 v29, 3, v27
            v_add_u32 v29, {STAT}, v29
            s_nop 7
            s_mov_b32 exec_hi, 0
            ds_write_b32 v29, v{SA+1}
            s_mov_b64 exec, -1
            """)
            arrive(a, 84, 85, C_STAT)
            a.e(f"""
            v_mul_f32 v30, {hexf(-LOG2E)}, v{SA}
            v_exp_f32 v30, v30
            s_nop 0
            v_add_f32 v30, 1.0, v30
            v_rcp_f32 v30, v30
            s_mov_b32 exec_hi, 0
            s_nop 0
            ds_write_b32 v28, v30
            s_mov_b64 exec, -1
            """)
        else:
            a.e(f"""
            v_lshlrev_b32 v29, 3, v27
            v_add_u32 v29, {STAT+4}, v29
            v_and_b32 v30, 1, v26
            v_cmp_ne_u32 s[40:41], 0, v30
            v_and_b32 v30, 2, v26
            v_cmp_ne_u32 s[42:43], 0, v30
            v_and_b32 v30, 8, v26
            v_cmp_ne_u32 s[44:45], 0, v30
            v_and_b32 v30, 16, v26
            v_cmp_ne_u32 s[46:47], 0, v30
            s_nop 1
            """)
            for i in range(8): a.e(f"v_cndmask_b32 v{SA+i}, v{SA+2*i}, v{SA+2*i+1}, s[40:41]")
            for i in range(4): a.e(f"v_cndmask_b32 v{SA+i}, v{SA+2*i}, v{SA+2*i+1}, s[42:43]")
            for i in range(2): a.e(f"v_cndmask_b32 v{SA+i}, v{SA+2*i}, v{SA+2*i+1}, s[44:45]")
            a.e(f"""
            v_cndmask_b32 v{SA}, v{SA}, v{SA+1}, s[46:47]
            v_bfe_u32 v30, v26, 2, 1
            v_lshrrev_b32 v31, 5, v{L}
            v_cmp_eq_u32 s[40:41], v30, v31
            s_nop 1
            s_mov_b64 exec, s[40:41]
            ds_write_b32 v29, v{SA}
            s_mov_b64 exec, -1
            """)
            arrive(a, 84, 85, C_STAT)
    a.e(f"s_cmp_lt_u32 s{S_J}, 2\ns_cbranch_scc1 S_PROD")
    a.e(f"s_cmp_ge_u32 s{S_W}, 2\ns_cbranch_scc1 S_CH1")
    chain(0)
    a.e("s_branch S_DONE")
    a.label("S_CH1")
    chain(1)
    a.e("s_branch S_DONE")
    a.label("S_PROD")
    a.e(f"s_cmp_lt_u32 s{S_W}, 2\ns_cbranch_scc1 S_KV")
    chain(1)
    chain(0)
    a.e("s_branch S_DONE")
    a.label("S_KV")
    wait_cnt(a, 84, 3, C_KVD, 4)
    def kvloop(isK):
        def rd(s):
            st = s % 4
            return [f"ds_read_b128 {vr(BF+4*st,4)}, v{4+(s&3)} offset:{128*(s>>2)}",
                    f"ds_read_b64_tr_b16 {vr(AF+4*st,2)}, v77 offset:{s*640}",
                    f"ds_read_b64_tr_b16 {vr(AF+4*st+2,2)}, v77 offset:{s*640+160}"]
        for s in range(3):
            for x in rd(s): a.e(x)
        for s in range(36):
            issued = min(36, s + 3)
            a.e(f"s_waitcnt lgkmcnt({3*(issued - s - 1)})")
            st = s % 4
            c = "0" if s == 0 else vr(SA,16)
            if isK: a.e(f"v_mfma_f32_32x32x16_bf16 {vr(SA,16)}, {vr(AF+4*st,4)}, {vr(BF+4*st,4)}, {c}")
            else:   a.e(f"v_mfma_f32_32x32x16_bf16 {vr(SA,16)}, {vr(BF+4*st,4)}, {vr(AF+4*st,4)}, {c}")
            if s + 3 < 36:
                for x in rd(s + 3): a.e(x)
    a.e(f"""
    v_lshrrev_b32 v13, 5, v{L}
    v_cmp_eq_u32 s[42:43], 0, v13                 ; hf==0
    s_lshl_b32 s46, s{S_RB}, 1
    s_add_u32 s46, s46, s{S_W}
    s_lshl_b32 s47, s46, 12
    s_add_u32 s47, s47, {WS_KV}
    s_cmp_eq_u32 s{S_J}, 1
    s_cbranch_scc1 S_V
    s_mov_b32 s36, {WS_TAG}
    buffer_load_dword v81, v80, s[20:23], s36 offen sc1
    """)
    kvloop(True)
    arrive(a, 84, 85, C_KVD)
    a.e("s_nop 7")
    B = 128
    for d in range(5):
        a.e(f"v_cvt_pk_bf16_f32 v{B+d}, v{SA+2*d}, v{SA+2*d+1}")
    a.e(f"v_cndmask_b32 v{B+4}, 0, v{B+4}, s[42:43]")
    norm_sum(a, B+5, [B, B+1, B+2, B+3, B+4], B+6)
    a.e(f"""
    v_mov_b32 v13, 0x3f803f80
    v_cndmask_b32 v{B+4}, v13, v{B+4}, s[42:43]
    buffer_store_dwordx4 {vr(B,4)}, v78, s[20:23], s47 offen sc1
    buffer_store_dword v{B+4}, v79, s[20:23], s47 offen offset:3072 sc1
    """)
    for pat in ["quad_perm:[1,0,3,2]", "quad_perm:[2,3,0,1]", "row_ror:4", "row_ror:8"]:
        a.e(f"v_max_f32_dpp v{B+5}, v{B+5}, v{B+5} {pat} row_mask:0xf bank_mask:0xf\ns_nop 1")
    a.e(f"""
    ds_swizzle_b32 v{B+6}, v{B+5} offset:{(16<<10)|0x1f}
    s_waitcnt lgkmcnt(0)
    v_max_f32 v{B+5}, v{B+5}, v{B+6}
    s_lshl_b32 s46, s46, 2
    s_add_u32 s46, s46, {WS_KMAX}
    s_mov_b64 exec, 1
    buffer_store_dword v{B+5}, v80, s[20:23], s46 offen sc1
    s_mov_b64 exec, -1
    s_branch S_KVST
    """)
    a.label("S_V")
    kvloop(False)
    arrive(a, 84, 85, C_KVD)
    a.e(f"""
    v_and_b32 v13, 31, v{L}
    v_mov_b32 v81, 0x3f803f80
    v_cmp_eq_u32 s[40:41], 18, v13
    v_cmp_lt_u32 s[44:45], 18, v13
    s_nop 3
    """)
    for d in range(8):
        a.e(f"v_cvt_pk_bf16_f32 v{B+d}, v{SA+2*d}, v{SA+2*d+1}")
    for d in range(8):
        a.e(f"v_cndmask_b32 v{B+d}, v{B+d}, v81, s[40:41]")
    for d in range(8):
        a.e(f"v_cndmask_b32 v{B+d}, v{B+d}, 0, s[44:45]")
    a.e(f"""
    buffer_store_dwordx4 {vr(B,4)}, v78, s[20:23], s47 offen offset:1024 sc1
    buffer_store_dwordx4 {vr(B+4,4)}, v78, s[20:23], s47 offen offset:2048 sc1
    """)
    a.label("S_KVST")
    ST.stamp('KV st')
    a.e(f"""
    s_waitcnt vmcnt(0)
    s_mov_b64 exec, 1
    ds_add_rtn_u32 v13, v84, v85 offset:{C_KVS}
    s_waitcnt lgkmcnt(0)
    v_readfirstlane_b32 s46, v13
    s_cmp_lg_u32 s46, 1
    s_cbranch_scc1 S_FLD
    v_mov_b32 v13, 1
    s_cmp_lg_u32 s3, 0
    s_cbranch_scc1 S_FLV
    v_add_u32 v13, 1, v81
    v_cmp_eq_u32 s[40:41], 0, v13
    s_mov_b32 s46, {WS_TAG}
    s_nop 0
    v_cndmask_b32 v13, v13, 1, s[40:41]
    s_nop 0
    buffer_store_dword v13, v80, s[20:23], s46 offen sc1
    """)
    a.label("S_FLV")
    a.e(f"""
    s_lshl_b32 s46, s{S_RB}, 3
    s_lshl_b32 s47, s{S_J}, 2
    s_add_u32 s46, s46, s47
    v_mov_b32 v3, s46
    global_store_dword v3, v13, s[60:61] sc1
    """)
    a.label("S_FLD")
    a.e("s_mov_b64 exec, -1")
    ST.stamp('KV pub')
    a.label("S_DONE")
    a.e("s_setprio 0")
    ST.stamp('pre done')

def gen_proj_att(a, ST):
    L = V_LANE
    ACC, BF, AF = 144, 16, 40
    a.e("s_setprio 2")
    a.e(f"""
    s_and_b32 s{S_RT}, s{S_W}, 1
    s_lshr_b32 s{S_KH}, s{S_W}, 1
    s_mov_b32 s41, {(2**32 + 11)//12}
    v_mov_b32 v14, {CNT}
    v_mov_b32 v15, 1
    s_and_b32 s44, s{S_J}, 3
    s_lshl_b32 s44, s44, 4               ; shift = 16*(j&3)
    s_mul_i32 s45, s{S_J}, 144
    s_sub_u32 s45, s45, s44
    """)
    for b in range(3):
        a.e(f"""
        s_add_u32 s46, s{S_W}, {4*b}
        s_lshl_b32 s46, s46, 6
        v_add_u32 v26, s46, v{L}
        v_mul_hi_u32 v27, v26, s41         ; row
        v_mul_u32_u24 v3, 12, v27
        v_sub_u32 v26, v26, v3             ; c
        v_mul_u32_u24 v27, 1152, v27
        v_lshl_add_u32 v27, v26, 4, v27
        v_add_u32 v{8+b}, s45, v27
        """)
    a.e(f"""
    v_lshrrev_b32 v26, 5, v{L}
    v_bfe_u32 v27, v{L}, 4, 1
    v_bfe_u32 v28, v{L}, 2, 2
    v_and_b32 v29, 3, v{L}
    v_lshl_add_u32 v30, v26, 3, v28          ; 8hf + r
    v_mul_u32_u24 v30, 192, v30
    v_lshl_add_u32 v30, v27, 5, v30
    v_lshl_add_u32 v30, v29, 3, v30
    s_mul_i32 s46, s{S_KH}, 72
    s_add_u32 s46, s46, s44
    v_add_u32 v11, s46, v30
    v_add_u32 v12, 32, v11
    """)
    xb_addr(a, L, S_RT, 4)
    a.e(f"s_mov_b32 s40, {(2**32 + 9)//10}")
    for b in range(5):
        a.e(f"""
        s_add_u32 s46, s{S_W}, {4*b}
        s_lshl_b32 s46, s46, 6
        v_add_u32 v26, s46, v{L}
        v_mul_hi_u32 v27, v26, s40
        v_mul_u32_u24 v3, 10, v27
        v_sub_u32 v26, v26, v3
        v_min_u32 v26, 8, v26
        v_mul_u32_u24 v27, 36, v27
        v_lshl_add_u32 v{72+b}, v26, 2, v27
        """)
    zero_counters(a)
    a.e("s_waitcnt lgkmcnt(0)\ns_barrier")
    mk_srd(a, 20, 62, 63, 0x10000000)
    def issue_w(q, buf, tag):
        for i in range(7):
            aa, b = divmod(i, 3)
            if i == 6: a.e(f"s_cmp_ge_u32 s{S_W}, 3\ns_cbranch_scc1 PW_SKIP_{tag}")
            a.e(f"""
            s_lshl_b32 s46, s{S_W}, 10
            s_add_u32 m0, s46, {RING + buf*PBUF + i*4096}
            s_mov_b32 s47, {q*144*1152 + aa*64*1152}
            buffer_load_dwordx4 v{8+b}, s[24:27], s47 offen lds
            """)
        a.label(f"PW_SKIP_{tag}")
    a.e(f"""
    s_cmp_ge_u32 s{S_J}, 2
    s_cbranch_scc1 PA_NOKVI
    s_cmp_eq_u32 s{S_J}, 1
    s_cselect_b32 s42, s54, s52
    s_cselect_b32 s43, s55, s53
    """)
    mk_srd(a, 24, 42, 43, 576*36)
    for i in range(23):
        aa, b = divmod(i, 5)
        if i == 22: a.e(f"s_cmp_ge_u32 s{S_W}, 2\ns_cbranch_scc1 PA_NOKVI")
        a.e(f"""
        s_lshl_b32 s46, s{S_W}, 8
        s_add_u32 m0, s46, {KVW + i*1024}
        s_mov_b32 s47, {aa*128*36}
        buffer_load_dword v{72+b}, s[24:27], s47 offen lds
        """)
    a.label("PA_NOKVI")
    mk_srd(a, 24, 50, 51, 576*1152)
    issue_w(0, 0, "q0"); issue_w(1, 1, "q1")
    a.e(f"s_cmp_lt_u32 s{S_J}, 2\ns_cbranch_scc1 PA_NOQ2")
    issue_w(2, 2, "q2a")
    a.e("s_branch PA_ISS")
    a.label("PA_NOQ2")
    a.e("s_waitcnt vmcnt(12)")
    arrive(a, 14, 15, C_KVD, wait=False)
    a.label("PA_ISS")
    ST.stamp('W iss')
    if TOUCH:
        a.e(f"""
        s_load_dwordx2 s[40:41], s[0:1], 32      ; wo
        s_load_dwordx4 s[44:47], s[0:1], 48      ; w1, b1
        s_load_dwordx4 s[52:55], s[0:1], 64      ; w2, b2
        s_load_dwordx2 s[42:43], s[0:1], 88      ; out
        s_waitcnt lgkmcnt(0)
        s_cmp_eq_u32 s{S_W}, 3
        s_cbranch_scc1 E_T7
        s_and_b32 s36, s{S_RB}, {NSH-1}
        s_lshl_b32 s36, s36, 6
        s_min_u32 s37, s{S_W}, 1
        s_mul_i32 s37, s37, {64*NSH}
        s_add_u32 s36, s36, s37
        v_add_u32 v26, s36, v{L}
        s_mov_b32 s36, {(2**32 + 8)//9}
        v_mul_hi_u32 v27, v26, s36
        v_mul_u32_u24 v28, 9, v27
        v_sub_u32 v26, v26, v28
        v_mul_u32_u24 v27, 9216, v27
        v_lshl_add_u32 v26, v26, 7, v27
        s_mul_i32 s37, s{S_J}, 1152
        v_add_u32 v26, s37, v26
        global_load_dword v252, v26, s[44:45]
        s_branch E_NOT
        """)
        a.label("E_T7")
        a.e(f"""
        s_mul_i32 s36, s{S_J}, {576*1152}
        s_add_u32 s52, s52, s36
        s_addc_u32 s53, s53, 0
        s_mul_i32 s36, s{S_J}, {72*1152}
        s_add_u32 s40, s40, s36
        s_addc_u32 s41, s41, 0
        s_mul_i32 s36, s{S_RB}, {64*1152}
        s_add_u32 s42, s42, s36
        s_addc_u32 s43, s43, 0
        s_mul_i32 s36, s3, {72*1024}
        s_add_u32 s36, s36, {WS_PART}
        s_add_u32 s44, s62, s36
        s_addc_u32 s45, s63, 0
        v_mov_b32 v26, s62
        v_mov_b32 v27, s63
        v_writelane_b32 v26, s52, 0
        v_writelane_b32 v27, s53, 0
        v_writelane_b32 v26, s40, 1
        v_writelane_b32 v27, s41, 1
        v_writelane_b32 v26, s46, 2
        v_writelane_b32 v27, s47, 2
        v_writelane_b32 v26, s54, 3
        v_writelane_b32 v27, s55, 3
        v_writelane_b32 v26, s42, 4
        v_writelane_b32 v27, s43, 4
        v_writelane_b32 v26, s44, 6
        v_writelane_b32 v27, s45, 6
        s_mov_b64 exec, 0xff
        global_load_dword v252, v[26:27], off
        s_mov_b64 exec, -1
        """)
        a.label("E_NOT")
    NT = 1 if TOUCH else 0
    wait_cnt(a, 14, 3, C_XL, 4)
    ST.stamp('x landed')
    tgt = [4]
    def wsync(vm):
        a.e(f"s_waitcnt vmcnt({vm})")
        arrive(a, 14, 15, C_PW, wait=True)
        wait_cnt(a, 14, 3, C_PW, tgt[0]); tgt[0] += 4
    def compute(q, buf):
        a.e(f"v_add_u32 v2, {RING + buf*PBUF}, v11\nv_add_u32 v13, {RING + buf*PBUF}, v12")
        def rd(s):
            S = 9*q + s; st = s % 4
            return [f"ds_read_b128 {vr(BF+4*st,4)}, v{4+(S&3)} offset:{128*(S>>2)}",
                    f"ds_read_b64_tr_b16 {vr(AF+8*st,2)}, v2 offset:{s*3072}",
                    f"ds_read_b64_tr_b16 {vr(AF+8*st+2,2)}, v2 offset:{s*3072+768}",
                    f"ds_read_b64_tr_b16 {vr(AF+8*st+4,2)}, v13 offset:{s*3072}",
                    f"ds_read_b64_tr_b16 {vr(AF+8*st+6,2)}, v13 offset:{s*3072+768}"]
        D = 3
        for s in range(D):
            for x in rd(s): a.e(x)
        for s in range(9):
            issued = min(9, s + D)
            a.e(f"s_waitcnt lgkmcnt({5*(issued - s - 1)})")
            st = s % 4
            c0 = "0" if (q == 0 and s == 0) else vr(ACC,16); c1 = "0" if (q == 0 and s == 0) else vr(ACC+16,16)
            a.e(f"v_mfma_f32_32x32x16_bf16 {vr(ACC,16)}, {vr(AF+8*st,4)}, {vr(BF+4*st,4)}, {c0}")
            a.e(f"v_mfma_f32_32x32x16_bf16 {vr(ACC+16,16)}, {vr(AF+8*st+4,4)}, {vr(BF+4*st,4)}, {c1}")
            if s + D < 9:
                for x in rd(s + D): a.e(x)
    a.e(f"s_cmp_lt_u32 s{S_J}, 2\ns_cbranch_scc1 PA_PROD")
    wsync(12 + NT)
    compute(0, 0)
    a.e("s_branch PA_J1")
    a.label("PA_PROD")
    tgt[0] = 4
    wsync(6 + NT)
    compute(0, 0)
    wait_cnt(a, 14, 3, C_KVD, 6)
    issue_w(2, 2, "q2b")
    a.label("PA_J1")
    wsync(6)
    issue_w(3, 0, "q3")
    compute(1, 1)
    wsync(6)
    compute(2, 2)
    wsync(0)
    compute(3, 0)
    arrive(a, 14, 15, C_P)
    ST.stamp('P computed')

V_B, V_BX, V_A, V_AX, V_OM, V_OX = 2, 6, 8, 12, 13, 14
V_T = 15
SETA = [16, 40]; SETB = [32, 56]
AX, BX = 64, 68
V_CNT, V_ONE = 84, 85
V_G = 86
V_OM2, V_OX2 = 92, 93
V_OMW, V_OMWH, V_OOB = 94, 95, 96
V_OXW = 97
V_BI = 100
ACC = 112
def acc(t, rt): return ACC + (t * 2 + rt) * 16
def accx(rt, rh): return 240 + (rt * 2 + rh) * 4

def merge(x, y):
    if not y: return list(x)
    if not x: return list(y)
    out = []; step = len(x) / len(y); yi = 0
    for i, e in enumerate(x):
        out.append(e)
        while yi < len(y) and (yi + 0.5) * step <= i + 1:
            out.append(y[yi]); yi += 1
    while yi < len(y):
        out.append(y[yi]); yi += 1
    return out

class GemmGen:
    def __init__(self, a, mode):
        self.a = a
        self.mode = mode
        self.perm = (mode == 'h')
    def b_main(self, dst, rel):
        if self.mode == 'x':
            return [f"ds_read_b128 {vr(SETB[dst]+4*rt,4)}, v{V_B+(rel&3)} offset:{128*(rel>>2) + rt*36864}" for rt in range(2)]
        return [f"ds_read_b128 {vr(SETB[dst]+4*rt,4)}, v{V_B} offset:{rel*KS + rt*1024}" for rt in range(2)]
    def b_extra(self, rel):
        L = []
        for rt in range(2):
            for rh in range(2):
                if self.mode == 'x':
                    e = (rel >> 1) & 1
                    L.append(f"ds_read_b128 {vr(BX+4*(2*rt+rh),4)}, v{V_BX+e} offset:{128*(rel>>2) + (32*rt+16*rh)*1152}")
                else:
                    L.append(f"ds_read_b128 {vr(BX+4*(2*rt+rh),4)}, v{V_BX} offset:{rel*KS + rt*1024 + rh*256}")
        return L
    def reads_main(self, b, ks, dst, rel):
        L = self.b_main(dst, rel)
        second = 2048 if self.perm else 1024
        for t in range(4):
            base = b * SLAB + ks * 4096
            L.append(f"ds_read_b64_tr_b16 {vr(SETA[dst]+4*t,2)}, v{V_A+t} offset:{base}")
            L.append(f"ds_read_b64_tr_b16 {vr(SETA[dst]+4*t+2,2)}, v{V_A+t} offset:{base+second}")
        return L
    def reads_extra(self, b, rel):
        second = 256 if self.perm else 128
        L = [f"ds_read_b64_tr_b16 {vr(AX,2)}, v{V_AX} offset:{b*SLAB + 8192}",
             f"ds_read_b64_tr_b16 {vr(AX+2,2)}, v{V_AX} offset:{b*SLAB + 8192 + second}"]
        return L + self.b_extra(rel)
    def mfmas_main(self, src):
        return [f"v_mfma_f32_32x32x16_bf16 {vr(acc(t,rt),16)}, {vr(SETA[src]+4*t,4)}, {vr(SETB[src]+4*rt,4)}, {vr(acc(t,rt),16)}"
                for t in range(4) for rt in range(2)]
    def mfmas_extra(self):
        return [f"v_mfma_f32_16x16x32_bf16 {vr(accx(rt,rh),4)}, {vr(AX,4)}, {vr(BX+4*(2*rt+rh),4)}, {vr(accx(rt,rh),4)}"
                for rt in range(2) for rh in range(2)]
    def interleave(self, mf, others):
        a = self.a; n = len(mf); k = 0
        per = -(-len(others) // n) if n else 0
        for m in mf:
            a.e(m)
            for _ in range(per):
                if k < len(others):
                    a.e(others[k]); k += 1
        while k < len(others):
            a.e(others[k]); k += 1
    def dstep(self, b, rel, dma0, dma1, vm0, vm1, next_reads=True):
        a = self.a
        a.e(f"s_waitcnt vmcnt({vm0}) lgkmcnt(0)" if vm0 is not None else "s_waitcnt lgkmcnt(0)")
        rd = self.reads_main(b, 1, 1, rel + 1) + self.reads_extra(b, rel)
        self.interleave(self.mfmas_main(0), merge(rd, dma0))
        a.e(f"s_waitcnt vmcnt({vm1}) lgkmcnt(0)" if vm1 is not None else "s_waitcnt lgkmcnt(0)")
        rd = self.reads_main(1 - b, 0, 0, rel + 2) if next_reads else []
        self.interleave(self.mfmas_main(1) + self.mfmas_extra(), merge(rd, dma1))
    def advance(self):
        a = self.a
        if self.mode == 'x':
            for b in range(4): a.e(f"v_add_u32 v{V_B+b}, 128, v{V_B+b}")
            for e in range(2): a.e(f"v_add_u32 v{V_BX+e}, 128, v{V_BX+e}")
        else:
            a.e(f"v_add_u32 v{V_B}, {4*KS}, v{V_B}\nv_add_u32 v{V_BX}, {4*KS}, v{V_BX}")

def dma_regular(b, phase, vom, vox):
    L = []
    for p in (range(4) if phase == 0 else range(4, 8)):
        L.append(f"s_add_u32 m0, s{S_M0B}, {b*SLAB + p*1024}\ns_nop 0\nbuffer_load_dwordx4 v{vom}, s[4:7], s{S_OFF} offen lds\ns_add_u32 s{S_OFF}, s{S_OFF}, s{S_STEP}")
    if phase == 1:
        L.append(f"s_add_u32 m0, s{S_M0B}, {b*SLAB + 8192}\ns_lshl_b32 s{S_T0}, s{S_STEP}, 3\ns_sub_u32 s{S_T0}, s{S_OFF}, s{S_T0}\nbuffer_load_dwordx4 v{vox}, s[4:7], s{S_T0} offen lds")
    return L
def dma_wo(slab, b, phase):
    L = []
    for pp in (range(4) if phase == 0 else range(4, 8)):
        p = 8 * slab + pp
        m = p % 6
        so = (18 * (p // 6) + 4 * m) * 1152
        voff = V_OMW if m <= 3 else (V_OMWH if m == 4 else V_OOB)
        if m == 5: so = 0
        L.append(f"s_add_u32 m0, s{S_M0B}, {b*SLAB + pp*1024}\ns_mov_b32 s{S_T0}, {so}\nbuffer_load_dwordx4 v{voff}, s[16:19], s{S_T0} offen lds")
    if phase == 1:
        L.append(f"s_add_u32 m0, s{S_M0B}, {b*SLAB + 8192}\ns_nop 0\nbuffer_load_dwordx4 v{V_OXW+slab}, s[16:19], 0 offen lds")
    return L

def gen_reduce(a, ST, wave_expr_sgpr, vb=16):
    L = V_LANE
    P1 = a.newlabel("XFP"); P2 = a.newlabel("XFD"); P3 = a.newlabel("XFW")
    a.e(f"""
    v_mov_b32 v{vb+2}, {CNT}
    v_mov_b32 v{vb+3}, 1
    s_cmp_lg_u32 s{wave_expr_sgpr}, 7
    s_cbranch_scc1 {P3}
    s_lshl_b32 s{S_T0}, s{S_RB}, 7
    s_add_u32 s{S_T0}, s{S_T0}, {WS_XF}
    v_and_b32 v{vb}, 7, v{L}
    v_lshlrev_b32 v{vb}, 2, v{vb}
    s_mov_b32 s39, 0x100000
    """)
    a.label(P1)
    a.e(f"""
    buffer_load_dword v{vb+1}, v{vb}, s[20:23], s{S_T0} offen sc1
    s_waitcnt vmcnt(0)
    v_cmp_ne_u32 vcc, s47, v{vb+1}
    s_nop 1
    s_cmp_eq_u64 vcc, 0
    s_cbranch_scc1 {P2}
    s_sleep 2
    s_sub_u32 s39, s39, 1
    s_cmp_lg_u32 s39, 0
    s_cbranch_scc1 {P1}
    """)
    a.label(P2)
    arrive(a, vb+2, vb+3, C_XF, wait=False)
    a.label(P3)
    wait_cnt(a, vb+2, vb, C_XF, 1)
    ST.stamp('flags ok')
    a.e(f"""
    s_load_dwordx2 s[48:49], s[0:1], 88
    s_waitcnt lgkmcnt(0)
    """)
    mk_srd(a, 24, 48, 49, 2048*576*2)
    def do_block(blk_sgpr):
        D = vb + 4
        a.e(f"""
        s_mul_i32 s{S_T0}, s{S_J}, 9
        s_add_u32 s{S_T0}, s{S_T0}, s{blk_sgpr}        ; bi
        s_lshl_b32 s{S_T1}, s{S_RB}, 3
        s_mul_i32 s{S_T1}, s{S_T1}, {72*1024}
        s_lshl_b32 s{S_T2}, s{S_T0}, 10
        s_add_u32 s{S_T1}, s{S_T1}, s{S_T2}
        s_add_u32 s{S_T1}, s{S_T1}, {WS_PART}
        v_lshlrev_b32 v{vb}, 4, v{L}
        """)
        for js in range(8):
            a.e(f"buffer_load_dwordx4 {vr(D+4*js,4)}, v{vb}, s[20:23], s{S_T1} offen sc1")
            if js < 7: a.e(f"s_add_u32 s{S_T1}, s{S_T1}, {72*1024}")
        a.e(f"""
        s_mul_hi_u32 s40, s{S_T0}, {(2**32+17)//18}      ; wsrc
        s_mul_i32 s41, s40, 18
        s_sub_u32 s41, s{S_T0}, s41                      ; pair
        s_lshl_b32 s42, s{S_RB}, 6
        s_cmp_ge_u32 s41, 16
        s_cselect_b32 s43, 1, 0
        """)
        LX = a.newlabel("RX"); LD = a.newlabel("RD")
        a.e(f"""
        s_cbranch_scc1 {LX}
        s_lshr_b32 s44, s41, 1               ; t*2+rt
        s_and_b32 s45, s44, 1                ; rt
        s_lshr_b32 s44, s44, 1               ; t
        s_lshl_b32 s45, s45, 5
        s_add_u32 s42, s42, s45
        s_mul_i32 s42, s42, 1152
        s_lshl_b32 s45, s40, 8
        s_add_u32 s42, s42, s45
        s_lshl_b32 s45, s44, 6
        s_add_u32 s42, s42, s45
        s_and_b32 s45, s41, 1
        s_lshl_b32 s45, s45, 5
        s_add_u32 s42, s42, s45
        v_and_b32 v{vb+1}, 31, v{L}
        v_mul_u32_u24 v{vb+1}, 1152, v{vb+1}
        v_lshrrev_b32 v{vb+2}, 5, v{L}
        v_lshl_add_u32 v{vb+1}, v{vb+2}, 4, v{vb+1}
        s_branch {LD}
        """)
        a.label(LX)
        a.e(f"""
        s_sub_u32 s45, s41, 16               ; rt
        s_lshl_b32 s45, s45, 5
        s_add_u32 s42, s42, s45
        s_mul_i32 s42, s42, 1152
        s_lshl_b32 s45, s40, 5
        s_add_u32 s42, s42, s45
        s_add_u32 s42, s42, 1024
        v_and_b32 v{vb+1}, 15, v{L}
        v_mul_u32_u24 v{vb+1}, 1152, v{vb+1}
        v_lshrrev_b32 v{vb+2}, 4, v{L}
        v_lshl_add_u32 v{vb+1}, v{vb+2}, 3, v{vb+1}
        """)
        a.label(LD)
        A = D + 32
        T = A + 8
        for js in range(8):
            a.e(f"s_waitcnt vmcnt({7-js})")
            for d in range(4):
                src = D + 4*js + d
                if js == 0:
                    a.e(f"v_lshlrev_b32 v{A+2*d}, 16, v{src}\nv_and_b32 v{A+2*d+1}, 0xffff0000, v{src}")
                else:
                    a.e(f"v_lshlrev_b32 v{T+2*d}, 16, v{src}\nv_and_b32 v{T+2*d+1}, 0xffff0000, v{src}")
            if js:
                for d in range(4):
                    a.e(f"v_pk_add_f32 {vr(A+2*d,2)}, {vr(A+2*d,2)}, {vr(T+2*d,2)}")
        for d in range(4):
            a.e(f"v_cvt_pk_bf16_f32 v{T+d}, v{A+2*d}, v{A+2*d+1}")
        LX2 = a.newlabel("RX"); LD2 = a.newlabel("RD")
        a.e(f"""
        s_cmp_eq_u32 s43, 1
        s_cbranch_scc1 {LX2}
        s_nop 0
        v_permlane32_swap_b32 v{T}, v{T+2}
        v_permlane32_swap_b32 v{T+1}, v{T+3}
        s_nop 1
        buffer_store_dwordx4 {vr(T,4)}, v{vb+1}, s[24:27], s42 offen
        s_branch {LD2}
        """)
        a.label(LX2)
        a.e(f"""
        s_add_u32 s45, s42, {16*1152}
        buffer_store_dwordx2 {vr(T,2)}, v{vb+1}, s[24:27], s42 offen
        buffer_store_dwordx2 {vr(T+2,2)}, v{vb+1}, s[24:27], s45 offen
        """)
        a.label(LD2)
    a.e(f"s_mov_b32 s46, s{wave_expr_sgpr}")
    do_block(46)
    LE = a.newlabel("RE")
    a.e(f"s_cmp_lg_u32 s{wave_expr_sgpr}, 4\ns_cbranch_scc1 {LE}\ns_mov_b32 s46, 8")
    do_block(46)
    a.label(LE)

def gen_mlp(a, ST):
    L = V_LANE
    a.e(f"""
    s_load_dwordx2 s[48:49], s[0:1], 32      ; wo
    s_load_dwordx4 s[52:55], s[0:1], 48      ; w1, b1
    s_load_dwordx4 s[56:59], s[0:1], 64      ; w2, b2
    v_mov_b32 v{V_CNT}, {CNT}
    v_mov_b32 v{V_ONE}, 1
    """)
    if PRIO_MLP: a.e(f"s_setprio {PRIO_MLP}")
    a.e(f"""
    v_lshrrev_b32 v16, 4, v{L}               ; l>>4
    v_and_b32 v17, 15, v{L}                  ; i
    v_lshlrev_b32 v18, 2, v16
    v_xor_b32 v18, v17, v18
    v_lshlrev_b32 v18, 4, v18
    s_lshl_b32 s{S_T1}, s{S_W}, 8
    v_add_u32 v18, s{S_T1}, v18              ; swz + 256w
    v_mul_u32_u24 v19, 9216, v16
    v_add_u32 v{V_OM}, v19, v18
    v_mul_u32_u24 v19, 1152, v16
    v_add_u32 v{V_OM2}, v19, v18
    v_mov_b32 v{V_OMW}, v{V_OM2}
    v_mov_b32 v{V_OOB}, 0x80000000
    v_cmp_gt_u32 vcc, 2, v16
    v_lshrrev_b32 v20, 1, v{L}               ; row 0..31
    v_and_b32 v21, 1, v{L}
    v_cndmask_b32 v{V_OMWH}, v{V_OOB}, v{V_OM2}, vcc
    v_lshlrev_b32 v21, 4, v21
    s_lshl_b32 s{S_T1}, s{S_W}, 5
    s_add_u32 s{S_T1}, s{S_T1}, 1024
    v_add_u32 v21, s{S_T1}, v21              ; 1024 + 32w + 16(l&1)
    v_mul_u32_u24 v22, 9216, v20
    v_add_u32 v{V_OX}, v22, v21
    v_mul_u32_u24 v22, 1152, v20
    v_add_u32 v{V_OX2}, v22, v21
    s_waitcnt lgkmcnt(0)
    s_mul_i32 s{S_T0}, s{S_J}, 1152
    s_add_u32 s52, s52, s{S_T0}
    s_addc_u32 s53, s53, 0
    s_sub_u32 s{S_T1}, {576*9216}, s{S_T0}
    """)
    mk_srd(a, 8, 52, 53, f"s{S_T1}")
    a.e(f"""
    s_mul_i32 s{S_M0B}, s{S_W}, {RINGW}
    s_add_u32 s{S_M0B}, s{S_M0B}, {RING}
    s_mov_b32 s4, s8
    s_mov_b32 s5, s9
    s_mov_b32 s6, s10
    s_mov_b32 s7, s11
    s_mov_b32 s{S_OFF}, 0
    s_mov_b32 s{S_STEP}, {4*9216}
    """)
    a.e(f"""
    s_mul_i32 s{S_T0}, s{S_J}, {576*1152}
    s_add_u32 s56, s56, s{S_T0}
    s_addc_u32 s57, s57, 0
    """)
    mk_srd(a, 12, 56, 57, 576*1152)
    a.e(f"""
    s_mul_i32 s{S_T0}, s{S_J}, {72*1152}
    s_add_u32 s48, s48, s{S_T0}
    s_addc_u32 s49, s49, 0
    """)
    mk_srd(a, 16, 48, 49, 72*1152)
    mk_srd(a, 20, 62, 63, 0x10000000)
    a.e(f"""
    v_and_b32 v22, 31, v{L}
    v_lshlrev_b32 v22, 1, v22
    v_cmp_gt_u32 vcc, 32, v{L}
    v_and_b32 v23, 15, v{L}
    v_lshlrev_b32 v23, 1, v23
    v_cndmask_b32 v22, v{V_OOB}, v22, vcc
    v_cmp_gt_u32 vcc, 16, v{L}
    s_mul_i32 s{S_T0}, s{S_J}, 1152
    s_lshl_b32 s{S_T1}, s{S_W}, 8
    v_cndmask_b32 v23, v{V_OOB}, v23, vcc
    s_add_u32 s{S_T0}, s{S_T0}, s{S_T1}       ; (576j + 128w)*2
    """)
    mk_srd(a, 24, 54, 55, 4608*2)
    for t in range(4):
        a.e(f"buffer_load_ushort v{V_BI+t}, v22, s[24:27], s{S_T0} offen offset:{64*t}")
    a.e(f"""
    s_mul_i32 s{S_T0}, s{S_J}, 1152
    s_lshl_b32 s{S_T2}, s{S_W}, 5
    s_add_u32 s{S_T0}, s{S_T0}, s{S_T2}
    s_add_u32 s{S_T0}, s{S_T0}, 1024
    buffer_load_ushort v{V_BI+4}, v23, s[24:27], s{S_T0} offen
    s_cmp_eq_u32 s{S_J}, 0
    s_cselect_b32 s{S_T3}, {576*2}, 0
    """)
    mk_srd(a, 24, 58, 59, f"s{S_T3}")
    for t in range(4):
        a.e(f"buffer_load_ushort v{V_BI+5+t}, v22, s[24:27], s{S_T1} offen offset:{64*t}")
    a.e(f"""
    s_add_u32 s{S_T2}, s{S_T2}, 1024
    buffer_load_ushort v{V_BI+9}, v23, s[24:27], s{S_T2} offen
    """)
    for sl in range(3):
        a.e(f"""
        v_add_u32 v22, {32*sl}, v20
        v_mul_u32_u24 v23, 2731, v22
        v_lshrrev_b32 v23, 16, v23
        v_mul_u32_u24 v24, 24, v23
        v_sub_u32 v24, v22, v24
        v_mul_u32_u24 v23, 18, v23
        v_add_u32 v23, v23, v24
        v_mul_u32_u24 v23, 1152, v23
        v_add_u32 v23, v23, v21
        v_cmp_gt_u32 vcc, 18, v24
        s_nop 1
        v_cndmask_b32 v{V_OXW+sl}, v{V_OOB}, v23, vcc
        """)
    ST.stamp('mlp setup')
    X = 112
    a.e(f"""
    v_lshrrev_b32 v16, 4, v{L}               ; rr
    v_and_b32 v17, 15, v{L}                  ; i
    v_cmp_gt_u32 s[40:41], 8, v17
    s_lshl_b32 s{S_T0}, s{S_W}, 4
    v_add_u32 v18, s{S_T0}, v16              ; 16w + rr
    v_lshlrev_b32 v76, 3, v18
    v_add_u32 v76, {STAT}, v76
    v_mul_u32_u24 v18, 1152, v18
    v_lshl_add_u32 v72, v17, 4, v18
    s_mov_b32 s42, {hexf(1.0/576)}
    """)
    for q in range(4):
        for p in range(5):
            a.e(f"ds_read_b128 {vr(X+(q*5+p)*4,4)}, v72 offset:{XH + q*4608 + p*256}")
        if q == 1: a.e("s_waitcnt lgkmcnt(0)")
    wait_cnt(a, V_CNT, V_T, C_STAT, 4)
    ST.stamp('stats ok')
    for q in range(4):
        a.e(f"ds_read_b64 {vr(56+2*q,2)}, v76 offset:{32*q}")
    a.e("s_waitcnt lgkmcnt(0)")
    for q in range(4):
        S2 = 56 + 2*q
        a.e(f"v_mul_f32 v{S2}, s42, v{S2}")
    for q in range(4):
        S2 = 56 + 2*q
        a.e(f"v_mul_f32 v{64+q}, v{S2}, v{S2}")
    for q in range(4):
        S2 = 56 + 2*q
        a.e(f"v_fma_f32 v{S2+1}, v{S2+1}, s42, -v{64+q}")
    for q in range(4):
        S2 = 56 + 2*q
        a.e(f"v_max_f32 v{S2+1}, 0, v{S2+1}")
    for q in range(4):
        S2 = 56 + 2*q
        a.e(f"v_add_f32 v{S2+1}, {hexf(1e-5)}, v{S2+1}")
    for q in range(4):
        S2 = 56 + 2*q
        a.e(f"v_rsq_f32 v{S2+1}, v{S2+1}")
    a.e("s_nop 0")
    for q in range(4):
        S2 = 56 + 2*q
        a.e(f"v_mul_f32 v{S2}, v{S2}, v{S2+1}")
    for q in range(4):
        S2 = 56 + 2*q
        a.e(f"v_sub_f32 v{S2}, 0, v{S2}")
    F0 = 16
    for q in range(4):
        xq = X + q*20; S2 = 56 + 2*q
        for i in range(20):
            a.e(f"v_lshlrev_b32 v{F0+2*i}, 16, v{xq+i}\nv_and_b32 v{F0+2*i+1}, 0xffff0000, v{xq+i}")
        for i in range(40):
            a.e(f"v_fma_f32 v{F0+i}, v{F0+i}, v{S2+1}, v{S2}")
        for i in range(20):
            a.e(f"v_cvt_pk_bf16_f32 v{xq+i}, v{F0+2*i}, v{F0+2*i+1}")
    ST.stamp('LN regs')
    wait_cnt(a, V_CNT, V_T, C_P, 4)
    ST.stamp('C_P ok')
    for ph in range(2):
        for s_ in dma_regular(0, ph, V_OM, V_OX): a.e(s_)
    ST.stamp('slab0 iss')
    for q in range(4):
        xq = X + q * 20
        for p in range(4):
            a.e(f"ds_write_b128 v72, {vr(xq+4*p,4)} offset:{XH + q*4608 + p*256}")
        a.e(f"s_mov_b64 exec, s[40:41]\nds_write_b128 v72, {vr(xq+16,4)} offset:{XH + q*4608 + 1024}\ns_mov_b64 exec, -1")
    arrive(a, V_CNT, V_ONE, C_Y)
    ST.stamp('Y written')
    for ph in range(2):
        for s_ in dma_regular(1, ph, V_OM, V_OX): a.e(s_)
    ST.stamp('LN done')

    def init_acc(bi):
        for t in range(4):
            a.e(f"v_mov_b32 v{SETA[0]+4*t}, v{bi+t}")
            for i in range(1, 4): a.e(f"v_mov_b32 v{SETA[0]+4*t+i}, 0")
        a.e(f"v_mov_b32 v{AX}, v{bi+4}")
        for i in range(1, 4): a.e(f"v_mov_b32 v{AX+i}, 0")
        a.e(f"""
        v_mov_b32 v{V_T}, 0x3f80
        v_cmp_gt_u32 vcc, 32, v{L}
        v_mov_b32 v{SETB[0]+1}, 0
        v_mov_b32 v{SETB[0]+2}, 0
        v_cndmask_b32 v{SETB[0]}, 0, v{V_T}, vcc
        v_mov_b32 v{SETB[0]+3}, 0
        v_cmp_gt_u32 vcc, 16, v{L}
        v_mov_b32 v{BX+1}, 0
        v_mov_b32 v{BX+2}, 0
        v_cndmask_b32 v{BX}, 0, v{V_T}, vcc
        v_mov_b32 v{BX+3}, 0
        s_nop 1
        """)
        for t in range(4):
            for rt in range(2):
                a.e(f"v_mfma_f32_32x32x16_bf16 {vr(acc(t,rt),16)}, {vr(SETA[0]+4*t,4)}, {vr(SETB[0],4)}, 0")
        for rt in range(2):
            for rh in range(2):
                a.e(f"v_mfma_f32_16x16x32_bf16 {vr(accx(rt,rh),4)}, {vr(AX,4)}, {vr(BX,4)}, 0")

    def setup_a(perm):
        a.e(f"""
        v_lshrrev_b32 v16, 5, v{L}               ; hf
        v_bfe_u32 v17, v{L}, 4, 1                ; chalf
        v_bfe_u32 v18, v{L}, 2, 2                ; r
        v_and_b32 v19, 3, v{L}                   ; c
        v_lshl_add_u32 v20, v16, {2 if perm else 3}, v18
        v_lshlrev_b32 v20, 8, v20
        v_lshl_add_u32 v20, v17, 5, v20
        v_lshl_add_u32 v20, v19, 3, v20
        v_add_u32 v20, s{S_M0B}, v20
        """)
        for t in range(4):
            a.e(f"v_xor_b32 v21, {t}, v18\nv_lshl_add_u32 v{V_A+t}, v21, 6, v20")
        if perm:
            a.e(f"v_lshlrev_b32 v21, 4, v16\nv_lshl_add_u32 v21, v17, 2, v21\nv_add_u32 v21, v21, v18")
        else:
            a.e(f"v_lshrrev_b32 v21, 4, v{L}\nv_lshl_add_u32 v21, v21, 3, v18")
        a.e(f"""
        v_lshlrev_b32 v21, 5, v21
        v_lshl_add_u32 v21, v19, 3, v21
        v_add_u32 v{V_AX}, s{S_M0B}, v21
        """)
    def setup_b_x():
        a.e(f"""
        v_and_b32 v16, 31, v{L}
        v_mul_u32_u24 v17, 1152, v16
        v_bfe_u32 v18, v16, 1, 3
        v_lshrrev_b32 v19, 5, v{L}
        """)
        for b in range(4):
            a.e(f"v_add_u32 v20, {2*b}, v19\nv_xor_b32 v20, v20, v18\nv_lshl_add_u32 v{V_B+b}, v20, 4, v17")
        a.e(f"""
        v_and_b32 v16, 15, v{L}
        v_mul_u32_u24 v17, 1152, v16
        v_bfe_u32 v18, v16, 1, 3
        v_lshrrev_b32 v19, 4, v{L}
        """)
        for e in range(2):
            a.e(f"v_add_u32 v20, {4*e}, v19\nv_xor_b32 v20, v20, v18\nv_lshl_add_u32 v{V_BX+e}, v20, 4, v17")
    def setup_b_h(base):
        a.e(f"""
        v_lshlrev_b32 v{V_B}, 4, v{L}
        v_add_u32 v{V_B}, {base}, v{V_B}
        v_lshrrev_b32 v16, 5, v{L}
        v_mul_u32_u24 v16, {KS}, v16
        v_bfe_u32 v17, v{L}, 4, 1
        v_lshl_add_u32 v16, v17, 9, v16
        v_and_b32 v17, 15, v{L}
        v_lshl_add_u32 v16, v17, 4, v16
        v_add_u32 v{V_BX}, {base}, v16
        """)
    setup_a(False)
    setup_b_x()
    a.e("s_waitcnt vmcnt(18)")
    init_acc(V_BI)
    wait_cnt(a, V_CNT, V_T, C_Y, 4)
    a.e("s_waitcnt vmcnt(9)")
    ST.stamp('G1 start')

    def run_gemm(G, vom, vox, tag, next_dma0, next_dma1, switch, hook=None):
        for s in G.reads_main(0, 0, 0, 0): a.e(s)
        a.e(f"s_mov_b32 s{S_IT}, {5 if NO_MLP else 8}")
        if NO_MLP: a.e(f"s_branch {tag}_SKIP")
        a.raw(".p2align 6")
        a.label(f"{tag}_LOOP")
        for d in range(2):
            G.dstep(d, 2*d, dma_regular(d, 0, vom, vox), dma_regular(d, 1, vom, vox), 9, 9)
        if hook: hook()
        if asmlib.STAMPS:
            for itv in (7, 5, 3, 1):
                LS = a.newlabel("ITS")
                a.e(f"s_cmp_lg_u32 s{S_IT}, {itv}\ns_cbranch_scc1 {LS}")
                ST.stamp(f"{tag} it{8-itv}")
                a.label(LS)
        G.advance()
        a.e(f"""
        s_sub_u32 s{S_IT}, s{S_IT}, 1
        s_cmp_lg_u32 s{S_IT}, 0
        s_cbranch_scc1 {tag}_LOOP
        """)
        if NO_MLP:
            a.label(f"{tag}_SKIP")
            if hook: hook()
        switch()
        G.dstep(0, 0, next_dma0(0), next_dma1(0), 9, 9)
        G.dstep(1, 2, next_dma0(1), next_dma1(1), 9, 9, next_reads=False)

    G1 = GemmGen(a, 'x')
    def sw1():
        a.e(f"""
        s_mov_b32 s4, s12
        s_mov_b32 s5, s13
        s_mov_b32 s6, s14
        s_mov_b32 s7, s15
        s_mov_b32 s{S_OFF}, 0
        s_mov_b32 s{S_STEP}, {4*1152}
        """)
    run_gemm(G1, V_OM, V_OX, "G1", lambda b: dma_regular(b, 0, V_OM2, V_OX2), lambda b: dma_regular(b, 1, V_OM2, V_OX2), sw1)
    arrive(a, V_CNT, V_ONE, C_G1)
    ST.stamp('G1 end')
    a.e(f"""
    s_mov_b32 s44, {hexf(GC1)}
    s_mov_b32 s45, {hexf(GC1)}
    v_mov_b32 v30, {hexf(GC2)}
    v_mov_b32 v31, {hexf(GC2)}
    v_and_b32 v16, 31, v{L}
    v_lshlrev_b32 v16, 2, v16
    v_add_u32 v16, {GBUF}, v16
    v_and_b32 v17, 15, v{L}
    v_lshlrev_b32 v17, 2, v17
    v_add_u32 v17, {GBUF}, v17
    ds_read_b32 v{V_G}, v16
    ds_read_b32 v{V_G+1}, v16 offset:128
    ds_read_b32 v{V_G+2}, v17
    ds_read_b32 v{V_G+3}, v17 offset:64
    ds_read_b32 v{V_G+4}, v17 offset:128
    ds_read_b32 v{V_G+5}, v17 offset:192
    s_nop 7
    """)
    def gelu_group(base, npairs, dst):
        for p0 in range(0, npairs, 2):
            ps = [p0, p0+1]
            for n, p in enumerate(ps):
                a.e(f"v_pk_mul_f32 {vr(16+4*n,2)}, {vr(base+2*p,2)}, {vr(base+2*p,2)}")
            for n, p in enumerate(ps):
                a.e(f"v_pk_fma_f32 {vr(16+4*n,2)}, {vr(16+4*n,2)}, s[44:45], v[30:31]")
            for n, p in enumerate(ps):
                a.e(f"v_pk_mul_f32 {vr(16+4*n,2)}, {vr(16+4*n,2)}, {vr(base+2*p,2)}")
            for n, p in enumerate(ps):
                a.e(f"v_exp_f32 v{16+4*n}, v{16+4*n}\nv_exp_f32 v{17+4*n}, v{17+4*n}")
            for n, p in enumerate(ps):
                a.e(f"v_pk_add_f32 {vr(16+4*n,2)}, {vr(16+4*n,2)}, 1.0 op_sel_hi:[1,0]")
            for n, p in enumerate(ps):
                a.e(f"v_rcp_f32 v{16+4*n}, v{16+4*n}\nv_rcp_f32 v{17+4*n}, v{17+4*n}")
            for n, p in enumerate(ps):
                a.e(f"v_pk_mul_f32 {vr(16+4*n,2)}, {vr(16+4*n,2)}, {vr(base+2*p,2)}")
            for n, p in enumerate(ps):
                a.e(f"v_cvt_pk_bf16_f32 v{dst+p}, v{16+4*n}, v{17+4*n}")
    a.e(f"""
    v_lshlrev_b32 v24, 4, v{L}
    s_mul_i32 s{S_T0}, s{S_W}, {8*KS}
    v_add_u32 v24, s{S_T0}, v24                  ; vH
    v_bfe_u32 v25, v{L}, 4, 1
    v_lshlrev_b32 v25, 9, v25
    v_and_b32 v26, 15, v{L}
    v_lshl_add_u32 v25, v26, 4, v25
    v_lshrrev_b32 v26, 5, v{L}
    v_lshl_add_u32 v25, v26, 3, v25
    s_add_u32 s{S_T0}, s{S_W}, 32
    s_mul_i32 s{S_T0}, s{S_T0}, {KS}
    v_add_u32 v25, s{S_T0}, v25                  ; vHx
    """)
    first = True
    for t in range(4):
        for rt in range(2):
            gelu_group(acc(t, rt), 8, acc(t, rt))
            if first:
                wait_cnt(a, V_CNT, 26, C_G1, 4)
                first = False
            for h in range(2):
                a.e(f"ds_write_b128 v24, {vr(acc(t,rt)+4*h,4)} offset:{XH + (2*t+h)*KS + rt*1024}")
    for rt in range(2):
        for rh in range(2):
            gelu_group(accx(rt, rh), 2, accx(rt, rh))
            a.e(f"ds_write_b64 v25, {vr(accx(rt,rh),2)} offset:{XH + rt*1024 + rh*256}")
    arrive(a, V_CNT, V_ONE, C_H)
    ST.stamp('GELU done')
    for i in range(6):
        a.e(f"v_sub_f32 v{V_G+i}, 1.0, v{V_G+i}")
    init_acc(V_BI + 5)
    setup_a(True)
    setup_b_h(XH)
    wait_cnt(a, V_CNT, V_T, C_H, 4)
    ST.stamp('G2 start')
    G2 = GemmGen(a, 'h')
    def hook2():
        L1 = a.newlabel("G2H")
        a.e(f"s_cmp_lg_u32 s{S_IT}, 5\ns_cbranch_scc1 {L1}")
        arrive(a, V_CNT, V_ONE, C_G2, wait=False)
        a.label(L1)
    run_gemm(G2, V_OM2, V_OX2, "G2", lambda b: dma_wo(b, b, 0), lambda b: dma_wo(b, b, 1), lambda: None, hook=hook2)
    ST.stamp('G2 end')
    a.e("s_nop 15")
    for t in range(4):
        for rt in range(2):
            for i in range(0, 16, 2):
                a.e(f"v_pk_mul_f32 {vr(acc(t,rt)+i,2)}, {vr(acc(t,rt)+i,2)}, {vr(V_G,2)} op_sel:[0,{rt}] op_sel_hi:[1,{rt}]")
    for rt in range(2):
        for rh in range(2):
            for i in range(0, 4, 2):
                a.e(f"v_pk_mul_f32 {vr(accx(rt,rh)+i,2)}, {vr(accx(rt,rh)+i,2)}, {vr(V_G+2+2*rt,2)} op_sel:[0,{rh}] op_sel_hi:[1,{rh}]")
    setup_b_h(OPB)
    wait_cnt(a, V_CNT, V_T, C_O, 4)
    ST.stamp('O ready')
    a.e(f"ds_read_b32 v{V_T}, v{V_CNT} offset:{C_TAG}")
    for s in G2.reads_main(0, 0, 0, 0): a.e(s)
    a.e(f"s_waitcnt lgkmcnt(0)\nv_readfirstlane_b32 s47, v{V_T}")
    G2.dstep(0, 0, dma_wo(2, 0, 0), dma_wo(2, 0, 1), 9, 9)
    G2.dstep(1, 2, [], [], 9, 5)
    G2.dstep(0, 4, [], [], 0, None, next_reads=False)
    ST.stamp('wo done')
    a.e(f"""
    s_mul_i32 s{S_T0}, s3, 72
    s_mul_i32 s{S_T1}, s{S_W}, 18
    s_add_u32 s{S_T0}, s{S_T0}, s{S_T1}
    s_lshl_b32 s{S_T0}, s{S_T0}, 10
    s_add_u32 s{S_T0}, s{S_T0}, {WS_PART}
    v_lshlrev_b32 v{V_T}, 4, v{L}
    s_nop 7
    """)
    for pr in range(18):
        src = ACC + 8*pr; dst = 16 + 4*(pr % 8)
        for d in range(4):
            a.e(f"v_cvt_pk_bf16_f32 v{dst+d}, v{src+2*d}, v{src+2*d+1}")
        if pr and pr % 4 == 0: a.e(f"s_add_u32 s{S_T0}, s{S_T0}, 4096")
        if pr >= 8: a.e("s_nop 0")
        a.e(f"buffer_store_dwordx4 {vr(dst,4)}, v{V_T}, s[20:23], s{S_T0} offen offset:{(pr%4)*1024} sc1")
    a.e("s_waitcnt vmcnt(0)")
    a.e(f"""
    s_mov_b64 exec, 1
    ds_add_rtn_u32 v16, v{V_CNT}, v{V_ONE} offset:{C_S}
    s_waitcnt lgkmcnt(0)
    v_readfirstlane_b32 s{S_T0}, v16
    s_cmp_lg_u32 s{S_T0}, 3
    s_cbranch_scc1 M_NOFLAG
    s_lshl_b32 s{S_T0}, s{S_RB}, 7
    s_lshl_b32 s{S_T1}, s{S_J}, 2
    s_add_u32 s{S_T0}, s{S_T0}, s{S_T1}
    s_add_u32 s{S_T0}, s{S_T0}, {WS_XF}
    v_mov_b32 v16, s47
    v_mov_b32 v17, 0
    buffer_store_dword v16, v17, s[20:23], s{S_T0} offen sc1
    """)
    a.label("M_NOFLAG")
    a.e("s_mov_b64 exec, -1")
    ST.stamp('published')
    gen_reduce(a, ST, S_W)

KVB = [16, 32, 48, 64]
QA = lambda h: 80 + 6*h
QB = lambda h: 84 + 6*h
P = 104
S = [112, 128]
O = lambda h: 144 + 16*h
AV_16, AV_4, A_CNT, A_ONE, A_G = 2, 3, 11, 12, 212
NRM = 208
S_RT, S_KH, S_KV, S_LP, S_PASS = 31, 32, 33, 34, 46
XQ = OPB
KVD = 3

def gen_att(a, ST):
    L = V_LANE
    PA = 144
    a.e(f"""
    v_lshlrev_b32 v{AV_16}, 4, v{L}
    v_lshlrev_b32 v{AV_4}, 2, v{L}
    v_mov_b32 v{A_CNT}, {CNT}
    v_mov_b32 v{A_ONE}, 1
    v_lshrrev_b32 v15, 5, v{L}
    v_cmp_eq_u32 s[40:41], 0, v15
    s_mov_b32 s44, {hexf(CSCALE)}
    s_mov_b32 s45, {hexf(CSCALE)}
    """)
    mk_srd(a, 20, 62, 63, 0x10000000)
    for i in range(0, 12, 2):
        a.e(f"v_pk_mul_f32 {vr(PA+i,2)}, {vr(PA+i,2)}, s[44:45]")
        a.e(f"v_pk_mul_f32 {vr(PA+16+i,2)}, {vr(PA+16+i,2)}, s[44:45]")
    for d in range(4):
        a.e(f"v_cvt_pk_bf16_f32 v{QA(0)+d}, v{PA+2*d}, v{PA+2*d+1}")
    a.e(f"v_cvt_pk_bf16_f32 v{QB(0)}, v{PA+8}, v{PA+9}")
    W = 16
    for d in range(6):
        a.e(f"v_cvt_pk_bf16_f32 v{W+d}, v{PA+16+2*d}, v{PA+16+2*d+1}")
    a.e(f"""
    v_mov_b32 v{QA(1)}, v{W+1}
    v_mov_b32 v{QA(1)+2}, v{W+3}
    v_mov_b32 v{QB(1)}, v{W+5}
    v_mov_b32 v24, v{W+2}
    s_nop 0
    v_permlane32_swap_b32 v{W}, v{W+2}
    s_nop 1
    v_cndmask_b32 v{QA(1)+1}, v{W}, v{W+2}, s[40:41]
    v_permlane32_swap_b32 v24, v{W+4}
    s_nop 1
    v_cndmask_b32 v{QA(1)+3}, v24, v{W+4}, s[40:41]
    v_cndmask_b32 v{QB(0)}, 0, v{QB(0)}, s[40:41]
    v_cndmask_b32 v{QB(1)}, 0, v{QB(1)}, s[40:41]
    s_mul_i32 s{S_T0}, s{S_W}, 2560
    s_add_u32 s{S_T0}, s{S_T0}, {XQ}
    v_add_u32 v5, s{S_T0}, v{AV_16}
    v_add_u32 v6, s{S_T0}, v{AV_4}
    ds_write_b128 v5, {vr(QA(0),4)}
    ds_write_b32 v6, v{QB(0)} offset:1024
    ds_write_b128 v5, {vr(QA(1),4)} offset:1280
    ds_write_b32 v6, v{QB(1)} offset:2304
    s_xor_b32 s{S_T1}, s{S_W}, 2
    s_mul_i32 s{S_T1}, s{S_T1}, 2560
    s_add_u32 s{S_T1}, s{S_T1}, {XQ}
    v_add_u32 v5, s{S_T1}, v{AV_16}
    v_add_u32 v6, s{S_T1}, v{AV_4}
    """)
    arrive(a, A_CNT, A_ONE, C_ST)
    for h in range(2):
        norm_sum(a, NRM+h, [QA(h), QA(h)+1, QA(h)+2, QA(h)+3, QB(h)], 4)
    wait_cnt(a, A_CNT, 13, C_ST, 4)
    a.e(f"""
    ds_read_b128 {vr(QA(2),4)}, v5
    ds_read_b32 v{QB(2)}, v6 offset:1024
    ds_read_b128 {vr(QA(3),4)}, v5 offset:1280
    ds_read_b32 v{QB(3)}, v6 offset:2304
    v_mov_b32 v14, 0x00003f80
    """)
    for b in range(4):
        a.e(f"v_cndmask_b32 v{KVB[b]+13}, 0, v14, s[40:41]")
    a.e("s_waitcnt lgkmcnt(0)")
    for h in range(2, 4):
        norm_sum(a, NRM+h, [QA(h), QA(h)+1, QA(h)+2, QA(h)+3, QB(h)], 4)
    for h in range(4):
        a.e(f"v_sqrt_f32 v{NRM+h}, v{NRM+h}")
    ST.stamp('Q ready')
    a.e(f"s_cmp_lg_u32 s{S_W}, 3\ns_cbranch_scc1 A_KVW\ns_mov_b32 s39, 0x100000")
    a.label("A_KVP")
    a.e(f"""
    global_load_dword v13, v{AV_4}, s[60:61] sc1
    s_waitcnt vmcnt(0)
    v_cmp_eq_u32 vcc, 0, v13
    s_nop 1
    s_cmp_eq_u64 vcc, 0
    s_cbranch_scc1 A_KVD
    s_sleep 2
    s_sub_u32 s39, s39, 1
    s_cmp_lg_u32 s39, 0
    s_cbranch_scc1 A_KVP
    """)
    a.label("A_KVD")
    a.e(f"""
    s_mov_b64 exec, 1
    ds_write_b32 v{A_CNT}, v13 offset:{C_TAG}
    ds_add_u32 v{A_CNT}, v{A_ONE} offset:{C_KV}
    s_mov_b64 exec, -1
    """)
    a.label("A_KVW")
    wait_cnt(a, A_CNT, 13, C_KV, 1)
    ST.stamp('KV ok')
    a.e(f"""
    ds_read_b32 v4, v{A_CNT} offset:{C_TAG}
    s_mov_b32 s{S_T1}, {WS_KMAX}
    buffer_load_dword v13, v{AV_4}, s[20:23], s{S_T1} offen sc1
    s_lshl_b32 s{S_KV}, s{S_KH}, 17
    s_add_u32 s{S_KV}, s{S_KV}, {WS_KV}
    """)
    def kv_load(buf):
        b = KVB[buf]
        a.e(f"""
        buffer_load_dwordx4 {vr(b,4)}, v{AV_16}, s[20:23], s{S_KV} offen sc1
        buffer_load_dword v{b+12}, v{AV_4}, s[20:23], s{S_KV} offen offset:3072 sc1
        buffer_load_dwordx4 {vr(b+4,4)}, v{AV_16}, s[20:23], s{S_KV} offen offset:1024 sc1
        buffer_load_dwordx4 {vr(b+8,4)}, v{AV_16}, s[20:23], s{S_KV} offen offset:2048 sc1
        s_add_u32 s{S_KV}, s{S_KV}, 4096
        """)
    for b in range(KVD): kv_load(b)
    a.e(f"""
    v_and_b32 v8, 31, v{L}
    v_lshlrev_b32 v8, 2, v8
    s_lshl_b32 s{S_T0}, s{S_RT}, 7
    s_add_u32 s{S_T0}, s{S_T0}, {GBUF}
    v_add_u32 v{A_G+1}, s{S_T0}, v8
    s_waitcnt vmcnt({4*KVD}) lgkmcnt(0)
    v_readfirstlane_b32 s47, v4
    """)
    for pat in ["quad_perm:[1,0,3,2]", "quad_perm:[2,3,0,1]", "row_ror:4", "row_ror:8"]:
        a.e(f"v_max_f32_dpp v13, v13, v13 {pat} row_mask:0xf bank_mask:0xf\ns_nop 1")
    a.e(f"""
    ds_swizzle_b32 v14, v13 offset:{(16<<10)|0x1f}
    s_waitcnt lgkmcnt(0)
    v_max_f32 v13, v13, v14
    v_mov_b32 v14, v13
    s_nop 1
    v_permlane32_swap_b32 v13, v14
    s_nop 1
    v_max_f32 v13, v13, v14
    v_sqrt_f32 v13, v13
    s_nop 0
    v_mul_f32 v13, {hexf(1.0 + 2.0**-6)}, v13
    """)
    if FORCE_FB:
        a.e(f"v_add_f32 v13, 0x43000000, v13")
    def set_m(h, vm):
        a.e(f"""
        v_and_b32 v4, 0xffff0000, v{vm}
        v_sub_f32 v5, v{vm}, v4
        v_and_b32 v6, 0xffff0000, v5
        v_sub_f32 v5, v5, v6
        v_lshrrev_b32 v5, 16, v5
        v_lshrrev_b32 v4, 16, v4
        v_or_b32 v4, v4, v6
        v_cndmask_b32 v{QB(h)}, v4, v{QB(h)}, s[40:41]
        v_cndmask_b32 v{QB(h)+1}, 0, v5, s[40:41]
        """)
    for h in range(4):
        a.e(f"v_mul_f32 v7, v{NRM+h}, v13\nv_sub_f32 v7, 0, v7")
        set_m(h, 7)
    a.e(f"s_mov_b32 s{S_PASS}, 4")
    if PF:
        a.e(f"""
        s_load_dwordx2 s[56:57], s[0:1], 64      ; w2
        s_load_dwordx2 s[58:59], s[0:1], 32      ; wo
        s_load_dwordx2 s[42:43], s[0:1], 48      ; w1
        s_waitcnt lgkmcnt(0)
        s_mul_i32 s{S_T0}, s{S_J}, 1152
        s_add_u32 s42, s42, s{S_T0}
        s_addc_u32 s43, s43, 0
        s_sub_u32 s{S_T1}, {576*9216}, s{S_T0}
        s_mul_i32 s{S_T0}, s{S_J}, {576*1152}
        s_add_u32 s56, s56, s{S_T0}
        s_addc_u32 s57, s57, 0
        s_mul_i32 s{S_T0}, s{S_J}, {72*1152}
        s_add_u32 s58, s58, s{S_T0}
        s_addc_u32 s59, s59, 0
        """)
        mk_srd(a, 24, 42, 43, f"s{S_T1}")
        mk_srd(a, 48, 56, 57, 576*1152)
        mk_srd(a, 52, 58, 59, 72*1152)
        a.e(f"""
        s_and_b32 s{S_T0}, s{S_RB}, {NSH-1}
        s_lshl_b32 s{S_T0}, s{S_T0}, 6
        s_mul_i32 s{S_T1}, s{S_W}, {64*NSH}
        s_add_u32 s{S_T0}, s{S_T0}, s{S_T1}
        s_mov_b32 s{S_T2}, {(2**32 + 8)//9}
        """)
        for k in range(1):
            a.e(f"""
            s_add_u32 s{S_T1}, s{S_T0}, {2*64*NSH}
            v_add_u32 v4, s{S_T1}, v{L}
            v_min_u32 v4, 5183, v4
            v_mul_hi_u32 v5, v4, s{S_T2}
            v_mul_u32_u24 v6, 9, v5
            v_sub_u32 v4, v4, v6
            v_mul_u32_u24 v5, 9216, v5
            v_lshl_add_u32 v{221+k}, v4, 7, v5
            """)
        a.e(f"""
        s_and_b32 s{S_T0}, s{S_RB}, {NSH-1}
        s_lshl_b32 s{S_T0}, s{S_T0}, 6
        v_add_u32 v215, s{S_T0}, v{L}
        v_lshlrev_b32 v215, 7, v215
        s_mul_i32 s{S_T1}, s{S_W}, {64*NSH*128}
        v_add_u32 v214, s{S_T1}, v215
        """)

    def qk_a(n_s, h, buf, c="0"):
        return f"v_mfma_f32_32x32x16_bf16 {vr(S[n_s],16)}, {vr(KVB[buf],4)}, {vr(QA(h),4)}, 0"
    def qk_b(n_s, h, buf):
        return f"v_mfma_f32_32x32x8_bf16 {vr(S[n_s],16)}, {vr(KVB[buf]+12,2)}, {vr(QB(h),2)}, {vr(S[n_s],16)}"
    def pv(h, t, buf):
        return f"v_mfma_f32_32x32x16_bf16 {vr(O(h),16)}, {vr(KVB[buf]+4+4*t,4)}, {vr(P+4*t,4)}, {vr(O(h),16)}"
    def ec(s, g):
        b = S[s] + 4*g
        for i in range(4): a.e(f"v_exp_f32 v{b+i}, v{b+i}")
        a.e(f"v_cvt_pk_bf16_f32 v{P+2*g}, v{b}, v{b+1}")
        a.e(f"v_cvt_pk_bf16_f32 v{P+2*g+1}, v{b+2}, v{b+3}")

    a.label("A_MAIN")
    for i in range(8): a.e(f"v_mov_b32 v{P+i}, 0")
    for i in range(4): a.e(f"v_mov_b32 v{KVB[3]+8+i}, 0")
    a.e("s_nop 1")
    for h in range(4):
        a.e(f"v_mfma_f32_32x32x16_bf16 {vr(O(h),16)}, {vr(P,4)}, {vr(P,4)}, 0")
    a.e(f"s_waitcnt vmcnt({4*(KVD-1)})")
    ST.stamp('loop start')
    a.e(f"s_setprio {PPAT[3] if len(set(PPAT)) > 1 else PPAT[0]}")
    a.e(qk_a(0, 0, 0)); a.e(qk_b(0, 0, 0))
    a.e(f"s_mov_b32 s{S_LP}, {1 if NO_ATT else 8}")
    a.e("s_nop 15")
    a.raw(".p2align 6")
    a.label("ATT_LOOP")
    for kb in range(4):
        for h in range(4):
            n = kb*4 + h
            cur, nxt = n % 2, (n + 1) % 2
            nh, nbuf = (h + 1) % 4, (kb if h < 3 else (kb + 1) % 4)
            ph, pbuf = (h - 1) % 4, (kb if h > 0 else (kb - 1) % 4)
            if h == 0 and len(set(PPAT)) > 1 and PPAT[kb] != PPAT[kb-1]: a.e(f"s_setprio {PPAT[kb]}")
            if h == 3: a.e(f"s_waitcnt vmcnt({4*(KVD-1)})")
            a.e(qk_a(nxt, nh, nbuf))
            ec(cur, 0)
            a.e(pv(ph, 1, pbuf))
            if h == 0: kv_load((kb + KVD) % 4)
            if PF and h == 1:
                LP = a.newlabel("PFX"); LQ = a.newlabel("PFY"); LR = a.newlabel("PFZ")
                a.e(f"""
                s_cmp_lg_u32 s{S_W}, {kb}
                s_cbranch_scc1 {LP}
                s_cmp_lt_u32 s{S_LP}, 6
                s_cbranch_scc1 {LP}
                s_cmp_eq_u32 s{S_LP}, 8
                s_cbranch_scc0 {LQ}
                buffer_load_dword v216, v221, s[24:27], 0 offen
                s_branch {LP}
                """)
                a.label(LQ)
                if kb == 2:
                    a.e(f"""
                    s_cmp_eq_u32 s{S_LP}, 6
                    s_cbranch_scc0 {LR}
                    buffer_load_dword v216, v215, s[52:55], 0 offen
                    s_branch {LP}
                    """)
                    a.label(LR)
                a.e(f"""
                buffer_load_dword v216, v214, s[48:51], 0 offen
                v_add_u32 v214, {4*64*NSH*128}, v214
                """)
                a.label(LP)
            ec(cur, 1)
            a.e(qk_b(nxt, nh, nbuf))
            ec(cur, 2)
            a.e(pv(h, 0, kb))
            ec(cur, 3)
    a.e(f"""
    s_sub_u32 s{S_LP}, s{S_LP}, 1
    s_cmp_lg_u32 s{S_LP}, 0
    s_cbranch_scc1 ATT_LOOP
    """)
    a.e("s_nop 1")
    a.e(pv(3, 1, 3))
    a.e(f"ds_read_b32 v{A_G}, v{A_G+1}")
    a.e("s_waitcnt vmcnt(0)\ns_nop 15")
    a.e("s_setprio 0")
    ST.stamp('loop end')
    a.e(f"""
    v_min_f32 v4, v{O(0)+10}, v{O(1)+10}
    v_min_f32 v5, v{O(2)+10}, v{O(3)+10}
    v_min_f32 v4, v4, v5
    v_mov_b32 v5, {hexf(2.0**-90)}
    v_cmp_nge_f32 vcc, v4, v5
    s_nop 1
    s_and_b64 vcc, vcc, s[40:41]
    s_cmp_eq_u64 vcc, 0
    s_cbranch_scc1 A_CHKOK
    """)
    arrive(a, A_CNT, A_ONE, C_FB, wait=False)
    a.label("A_CHKOK")
    wait_cnt(a, A_CNT, 13, C_G2, 4)
    ST.stamp('G2 ok')
    a.e(f"""
    s_mul_i32 s{S_T0}, s{S_W}, 6144
    v_add_u32 v13, s{S_T0}, v{AV_16}
    s_xor_b32 s{S_T1}, s{S_W}, 2
    s_mul_i32 s{S_T1}, s{S_T1}, 6144
    v_add_u32 v14, s{S_T1}, v{AV_16}
    """)
    for n, h in enumerate([2, 3]):
        for qd in range(3):
            a.e(f"ds_write_b128 v13, {vr(O(h)+4*qd,4)} offset:{XH + n*3072 + qd*1024}")
    arrive(a, A_CNT, A_ONE, C_X)
    wait_cnt(a, A_CNT, 15, C_X, f"s{S_PASS}")
    a.e(f"""
    s_cmp_lg_u32 s{S_PASS}, 4
    s_cbranch_scc1 A_NOFB
    ds_read_b32 v15, v{A_CNT} offset:{C_FB}
    s_waitcnt lgkmcnt(0)
    v_readfirstlane_b32 s{S_T0}, v15
    s_cmp_eq_u32 s{S_T0}, 0
    s_cbranch_scc1 A_NOFB
    """)
    for h in range(4):
        a.e(f"v_mov_b32 v{NRM+h}, 0xff800000")
        a.e(f"v_cndmask_b32 v{QB(h)}, 0, v{QB(h)}, s[40:41]\nv_mov_b32 v{QB(h)+1}, 0")
    a.e(f"""
    s_lshl_b32 s{S_KV}, s{S_KH}, 17
    s_add_u32 s{S_KV}, s{S_KV}, {WS_KV}
    s_mov_b32 s{S_LP}, 32
    """)
    a.label("A_MAXL")
    kv_load(0)
    a.e("s_waitcnt vmcnt(0)")
    for h in range(4):
        a.e(qk_a(0, h, 0)); a.e(qk_b(0, h, 0))
        a.e("s_nop 15\ns_nop 7")
        for i in range(0, 16, 2):
            a.e(f"v_max3_f32 v{NRM+h}, v{S[0]+i}, v{S[0]+i+1}, v{NRM+h}")
    a.e(f"""
    s_sub_u32 s{S_LP}, s{S_LP}, 1
    s_cmp_lg_u32 s{S_LP}, 0
    s_cbranch_scc1 A_MAXL
    """)
    for h in range(4):
        a.e(f"""
        v_mov_b32 v4, v{NRM+h}
        s_nop 1
        v_permlane32_swap_b32 v{NRM+h}, v4
        s_nop 1
        v_max_f32 v{NRM+h}, v{NRM+h}, v4
        """)
    a.e(f"""
    s_mul_i32 s{S_T0}, s{S_W}, 6144
    v_add_u32 v13, s{S_T0}, v{AV_4}
    s_xor_b32 s{S_T1}, s{S_W}, 2
    s_mul_i32 s{S_T1}, s{S_T1}, 6144
    v_add_u32 v14, s{S_T1}, v{AV_4}
    """)
    for h in range(4):
        a.e(f"ds_write_b32 v13, v{NRM+h} offset:{XH + 256*h}")
    arrive(a, A_CNT, A_ONE, C_M)
    wait_cnt(a, A_CNT, 15, C_M, 4)
    for h in range(4):
        a.e(f"ds_read_b32 v{4+h if False else 96+0+0 if False else 217+h}, v14 offset:{XH + 256*((h+2)%4)}")
    a.e("s_waitcnt lgkmcnt(0)")
    for h in range(4):
        a.e(f"v_max_f32 v7, v{NRM+h}, v{217+h}\nv_sub_f32 v7, 0, v7")
        set_m(h, 7)
    arrive(a, A_CNT, A_ONE, C_M)
    wait_cnt(a, A_CNT, 15, C_M, 8)
    a.e(f"""
    s_lshl_b32 s{S_KV}, s{S_KH}, 17
    s_add_u32 s{S_KV}, s{S_KV}, {WS_KV}
    s_mov_b32 s{S_PASS}, 8
    """)
    for b in range(KVD): kv_load(b)
    a.e("s_branch A_MAIN")
    a.label("A_NOFB")
    a.e(f"""
    s_xor_b32 s{S_T1}, s{S_W}, 2
    s_mul_i32 s{S_T1}, s{S_T1}, 6144
    v_add_u32 v14, s{S_T1}, v{AV_16}
    """)
    for n in range(2):
        for qd in range(3):
            a.e(f"ds_read_b128 {vr(S[0]+ (n*12) + 4*qd,4)}, v14 offset:{XH + n*3072 + qd*1024}")
    a.e("s_waitcnt lgkmcnt(0)")
    for n in range(2):
        for i in range(12):
            a.e(f"v_add_f32 v{16+12*n+i}, v{O(n)+i}, v{S[0]+12*n+i}")
    a.e(f"""
    s_lshl_b32 s{S_T0}, s{S_RT}, 10
    s_add_u32 s{S_T0}, s{S_T0}, {OPB}
    v_add_u32 v13, s{S_T0}, v{AV_16}
    s_mul_i32 s{S_T1}, s{S_KH}, {3*KS}
    v_add_u32 v13, s{S_T1}, v13
    """)
    for n in range(2):
        b = 16 + 12*n
        a.e(f"""
        v_mov_b32 v4, v{b+10}
        v_mov_b32 v5, v{b+10}
        s_nop 1
        v_permlane32_swap_b32 v4, v5
        s_nop 1
        v_rcp_f32 v5, v4
        s_nop 0
        v_mul_f32 v5, v5, v{A_G}
        """)
        for i in range(10):
            a.e(f"v_mul_f32 v{b+i}, v5, v{b+i}")
        a.e(f"""
        v_cvt_pk_bf16_f32 v40, v{b}, v{b+1}
        v_cvt_pk_bf16_f32 v41, v{b+2}, v{b+3}
        v_cvt_pk_bf16_f32 v42, v{b+4}, v{b+5}
        v_cvt_pk_bf16_f32 v43, v{b+6}, v{b+7}
        v_cvt_pk_bf16_f32 v44, v{b+8}, v{b+9}
        v_mov_b32 v45, 0
        v_cndmask_b32 v44, 0, v44, s[40:41]
        """)
        for g in range(3):
            x = 3*n + g
            a.e(f"ds_write_b64 v13, {vr(40+2*g,2)} offset:{(x>>1)*KS + 8*(x&1)}")
    arrive(a, A_CNT, A_ONE, C_O)
    ST.stamp('O written')
    a.e(f"s_add_u32 s{S_W}, s{S_W}, 4")
    gen_reduce(a, ST, S_W)

def gen_merged(a):
    kernel_header(a, KNAME)
    ST = Stamper(a, 1)
    a.e(f"""
    s_cmp_ge_u32 s2, 256
    s_cbranch_scc1 K_END
    """)
    if XMAP == 0:
        a.e(f"s_lshr_b32 s{S_RB}, s2, 3\ns_and_b32 s{S_J}, s2, 7")
    elif XMAP == 1:
        a.e(f"""
        s_and_b32 s{S_J}, s2, 3
        s_lshl_b32 s{S_J}, s{S_J}, 1
        s_bfe_u32 s{S_T0}, s2, 0x10003
        s_or_b32 s{S_J}, s{S_J}, s{S_T0}
        s_bfe_u32 s{S_RB}, s2, 0x10002
        s_lshl_b32 s{S_RB}, s{S_RB}, 4
        s_lshr_b32 s{S_T0}, s2, 4
        s_or_b32 s{S_RB}, s{S_RB}, s{S_T0}
        """)
    elif XMAP == 2:
        a.e(f"""
        s_and_b32 s{S_J}, s2, 1
        s_lshl_b32 s{S_J}, s{S_J}, 2
        s_bfe_u32 s{S_T0}, s2, 0x20003
        s_or_b32 s{S_J}, s{S_J}, s{S_T0}
        s_bfe_u32 s{S_RB}, s2, 0x20001
        s_lshl_b32 s{S_RB}, s{S_RB}, 3
        s_lshr_b32 s{S_T0}, s2, 5
        s_or_b32 s{S_RB}, s{S_RB}, s{S_T0}
        """)
    a.e(f"""
    s_lshl_b32 s3, s{S_RB}, 3
    s_or_b32 s3, s3, s{S_J}
    v_lshrrev_b32 v2, 6, v0
    v_and_b32 v{V_LANE}, 63, v0
    s_nop 0
    v_readfirstlane_b32 s{S_W}, v2
    """)
    ST.stamp('start'); ST.rstamp(30)
    gen_entry(a, ST)
    n0 = ST.n
    a.e(f"s_cmp_ge_u32 s{S_W}, 4\ns_cbranch_scc1 K_ATT")
    gen_pre_mlp(a, ST)
    gen_mlp(a, ST)
    ST.stamp('end'); ST.rstamp(31)
    if asmlib.STAMPS: a.e("s_waitcnt vmcnt(0)")
    ST.flush(62, 63, S_W, vtmp=200)
    a.e("s_endpgm")
    mlp_names = list(ST.names)
    a.label("K_ATT")
    ST.n = n0; ST.names = ST.names[:n0]
    a.e(f"s_sub_u32 s{S_W}, s{S_W}, 4")
    if CODEPF:
        a.e(f"""
        s_getpc_b64 s[44:45]
        """)
        a.label("CPF_PC")
        a.e(f"""
        s_sub_u32 s44, s44, CPF_PC-{KNAME}
        s_subb_u32 s45, s45, 0
        s_lshl_b32 s46, s{S_W}, 14
        v_lshlrev_b32 v253, 7, v{V_LANE}
        v_add_u32 v253, s46, v253
        v_min_u32 v253, K_LAST-{KNAME}, v253
        global_load_dword v254, v253, s[44:45]
        v_add_u32 v253, 8192, v253
        v_min_u32 v253, K_LAST-{KNAME}, v253
        global_load_dword v254, v253, s[44:45]
        """)
    gen_proj_att(a, ST)
    gen_att(a, ST)
    ST.stamp('end'); ST.rstamp(31)
    if asmlib.STAMPS: a.e("s_waitcnt vmcnt(0)")
    ST.flush(62, 63, S_W, vtmp=200)
    a.label("K_END")
    a.label("K_LAST")
    a.e("s_endpgm")
    return mlp_names, list(ST.names)

def build():
    a = Asm()
    hdr = open("gated_mix__grouped_kv_mqa__mixer_channel_mlp__prompt.s.ref").read().split("\n")
    top = [l for l in hdr if l.startswith(";") and "@launch" not in l and "Override launch" not in l and "grid=ceil" not in l]
    a.raw('.amdgcn_target "amdgcn-amd-amdhsa--gfx950"')
    a.raw(".text")
    names = gen_merged(a)
    txt = "\n".join(top) + f"\n; @launch grid=(256,1,1) block=(512,1,1) lds={LDS_BYTES}\n" + a.text() + '.section .rodata,"a"\n.p2align 6\n' + kernel_desc(KNAME, 256)
    return txt, names
if __name__ == "__main__":
    import sys
    asmlib.STAMPS = bool(os.environ.get("STAMPS"))
    out = sys.argv[1] if len(sys.argv) > 1 else "m.s"
    txt, names = build()
    open(out, "w").write(txt)
    open(out + ".mn", "w").write(",".join(names[0])); open(out + ".an", "w").write(",".join(names[1]))
    print("wrote", out)
```

```python
from asmlib import *
import asmlib
import math, os
NO_ATT = bool(os.environ.get('NO_ATT')); NO_MLP = bool(os.environ.get('NO_MLP'))
PRIO_ATT = int(os.environ.get('PRIO_ATT', '0')); PRIO_MLP = int(os.environ.get('PRIO_MLP', '0'))
FORCE_FB = bool(os.environ.get('FORCE_FB'))
PPAT = [int(c) for c in os.environ.get('PPAT', '0000')]
GELU_PRIO = int(os.environ.get('GELU_PRIO', '0'))

KNAME = "gated_mix__grouped_kv_mqa__mixer_channel_mlp__prompt_kernel"
LOG2E = math.log2(math.e)
CSCALE = LOG2E / math.sqrt(18.0)
GC2 = -2.0 * math.sqrt(2.0 / math.pi) * LOG2E
GC1 = GC2 * 0.044715

WS_KV   = 0x000000
WS_KMAX = 0x040000
WS_TAG  = 0x041000
WS_XF   = 0x042000
WS_PART = 0x100000

KS = 2080
XH = 0
RING = 36 * KS
SLAB = 9216
SLABS = 4 * SLAB
OPB = RING + 2 * SLABS
CNT = OPB + 6 * KS
GW = CNT + 96
GBUF = GW + 1152
STAT = GBUF + 256
LDS_BYTES = STAT + 512
PCH = 27648
PC0 = RING
SROW = 192
STG = OPB
C_Y, C_G1, C_H, C_G2, C_X, C_O, C_S, C_FB, C_M, C_TAG = 0, 4, 8, 12, 16, 20, 24, 28, 32, 36
C_PW, C_P, C_ST, C_STAT, C_KV, C_XF = 40, 44, 48, 52, 56, 60
C_XL, C_KVD, C_KVS, C_XR, C_KVL = 64, 68, 72, 76, 80
XMAP = int(os.environ.get('XMAP', '0'))

S_RB, S_J, S_W = 28, 29, 30
S_OFF, S_STEP, S_M0B, S_IT = 31, 32, 33, 34
S_T0, S_T1, S_T2, S_T3 = 35, 36, 37, 38
S_RT, S_KH, S_KV, S_LP, S_PASS = 31, 32, 33, 34, 46
V_LANE = 1

def mk_srd(a, s, lo, hi, size):
    a.e(f"""
    s_mov_b32 s{s}, s{lo}
    s_and_b32 s{s+1}, s{hi}, 0xffff
    s_mov_b32 s{s+2}, {size}
    s_mov_b32 s{s+3}, 0x00020000
    """)
def arrive(a, vcnt, vone, off, wait=True):
    if wait: a.e("s_waitcnt lgkmcnt(0)")
    a.e(f"""
    s_mov_b64 exec, 1
    ds_add_u32 v{vcnt}, v{vone} offset:{off}
    s_mov_b64 exec, -1
    """)
def wait_cnt(a, vcnt, vtmp, off, target):
    L = a.newlabel("WAITC"); D = a.newlabel("WAITD")
    a.e("s_mov_b32 s39, 0x40000")
    a.label(L)
    a.e(f"""
    ds_read_b32 v{vtmp}, v{vcnt} offset:{off}
    s_waitcnt lgkmcnt(0)
    v_readfirstlane_b32 s{S_T3}, v{vtmp}
    s_cmp_ge_u32 s{S_T3}, {target}
    s_cbranch_scc1 {D}
    s_sleep 1
    s_sub_u32 s39, s39, 1
    s_cmp_lg_u32 s39, 0
    s_cbranch_scc1 {L}
    """)
    a.label(D)

KVW = PC0 + 2*PCH
TOUCH = int(os.environ.get('TOUCH', '1'))
PF = int(os.environ.get('PF', '1'))
CODEPF = int(os.environ.get('CODEPF', '0'))
WQPF = int(os.environ.get('WQPF', '1'))
NSH = 16 if XMAP == 1 else (8 if XMAP == 2 else 32)
def gen_entry(a, ST):
    a.e(f"""
    s_load_dwordx4 s[48:51], s[0:1], 0       ; x, wq
    s_load_dwordx4 s[52:55], s[0:1], 16
    s_load_dwordx2 s[56:57], s[0:1], 80      ; gate_w
    s_load_dwordx4 s[60:63], s[0:1], 96
    s_load_dwordx2 s[58:59], s[0:1], 48      ; w1
    """)

def zero_counters(a):
    a.e(f"""
    v_mov_b32 v3, {CNT}
    v_mov_b32 v20, 0
    v_mov_b32 v21, 0
    v_mov_b32 v22, 0
    v_mov_b32 v23, 0
    ds_write_b128 v3, v[20:23]
    ds_write_b128 v3, v[20:23] offset:16
    ds_write_b128 v3, v[20:23] offset:32
    ds_write_b128 v3, v[20:23] offset:48
    ds_write_b128 v3, v[20:23] offset:64
    ds_write_b128 v3, v[20:23] offset:80
    """)

def gen_x_issue(a, ST):
    L = V_LANE
    a.e(f"s_mov_b32 s40, {(2**32 + 71)//72}")
    for i in range(9):
        a.e(f"""
        v_add_u32 v26, {64*i}, v{L}
        v_mul_hi_u32 v27, v26, s40
        v_mul_u32_u24 v3, 72, v27
        v_sub_u32 v26, v26, v3             ; pos
        v_lshrrev_b32 v28, 1, v27
        v_xor_b32 v28, v28, v26
        v_bfi_b32 v28, 7, v28, v26
        v_mul_u32_u24 v27, 1152, v27
        v_lshl_add_u32 v{4+i}, v28, 4, v27
        v_xor_b32 v28, 4, v28
        v_lshl_add_u32 v{30+i}, v28, 4, v27
        """)
    a.e(f"""
    s_mul_i32 s45, s{S_RB}, {64*1152}
    s_mul_i32 s46, s{S_W}, 18432
    s_add_u32 s45, s45, s46
    s_waitcnt lgkmcnt(0)
    s_add_u32 s42, s48, s45
    s_addc_u32 s43, s49, 0
    """)
    mk_srd(a, 24, 42, 43, 18432)
    a.e("s_mov_b32 s44, 9216")
    for h in range(2):
        for i in range(9):
            a.e(f"""
            s_add_u32 m0, s46, {XH + h*9216 + i*1024}
            s_nop 0
            buffer_load_dwordx4 v{(4 if h == 0 else 30)+i}, s[24:27], {'0' if h == 0 else 's44'} offen lds
            """)
    a.e(f"""
    s_cmp_lg_u32 s{S_W}, 3
    s_cbranch_scc1 E_NOGW
    v_lshlrev_b32 v3, 4, v{L}
    s_mov_b32 m0, {GW}
    s_nop 0
    global_load_lds_dwordx4 v3, s[56:57]
    s_mov_b64 exec, 0xff
    global_load_lds_dwordx4 v3, s[56:57] offset:1024
    s_mov_b64 exec, -1
    v_mov_b32 v4, 0x3f803f80
    v_mov_b32 v5, 0x3f803f80
    v_mov_b32 v6, 0x3f803f80
    v_mov_b32 v7, 0x3f803f80
    v_add_u32 v3, {XH + 73728}, v3
    ds_write_b128 v3, v[4:7]
    s_mov_b64 exec, 0xff
    ds_write_b128 v3, v[4:7] offset:1024
    s_mov_b64 exec, -1
    """)
    a.label("E_NOGW")
    zero_counters(a)
    a.e("s_waitcnt lgkmcnt(0)\ns_barrier")
    ST.stamp('x iss')
    a.e(f"""
    v_lshrrev_b32 v16, 4, v{L}               ; l>>4
    v_and_b32 v17, 15, v{L}                  ; i
    v_lshlrev_b32 v18, 2, v16
    v_xor_b32 v18, v17, v18
    v_lshlrev_b32 v18, 4, v18
    s_lshl_b32 s{S_T1}, s{S_W}, 8
    v_add_u32 v18, s{S_T1}, v18              ; swz + 256w
    v_mul_u32_u24 v19, 9216, v16
    v_add_u32 v{V_OM}, v19, v18
    v_lshrrev_b32 v20, 1, v{L}               ; row 0..31
    v_and_b32 v21, 1, v{L}
    v_lshlrev_b32 v21, 4, v21
    s_lshl_b32 s{S_T1}, s{S_W}, 5
    s_add_u32 s{S_T1}, s{S_T1}, 1024
    v_add_u32 v21, s{S_T1}, v21              ; 1024 + 32w + 16(l&1)
    v_mul_u32_u24 v22, 9216, v20
    v_add_u32 v{V_OX}, v22, v21
    s_mul_i32 s{S_T0}, s{S_J}, 1152
    s_add_u32 s58, s58, s{S_T0}
    s_addc_u32 s59, s59, 0
    s_sub_u32 s{S_T1}, {576*9216}, s{S_T0}
    """)
    mk_srd(a, 8, 58, 59, f"s{S_T1}")
    a.e(f"""
    s_mul_i32 s{S_M0B}, s{S_W}, {SLAB}
    s_add_u32 s{S_M0B}, s{S_M0B}, {RING}
    s_mov_b32 s4, s8
    s_mov_b32 s5, s9
    s_mov_b32 s6, s10
    s_mov_b32 s7, s11
    s_mov_b32 s{S_OFF}, 0
    s_mov_b32 s{S_STEP}, {4*9216}
    """)

def xb_addr(a, L, rt_sgpr, dst):
    a.e(f"v_lshrrev_b32 v26, 5, v{L}\nv_and_b32 v27, 31, v{L}")
    if rt_sgpr is None:
        a.e("v_mul_u32_u24 v28, 1152, v27")
    else:
        a.e(f"s_lshl_b32 s36, s{rt_sgpr}, 5\nv_add_u32 v28, s36, v27\nv_mul_u32_u24 v28, 1152, v28")
    a.e("v_bfe_u32 v29, v27, 1, 3")
    for b in range(4):
        a.e(f"v_add_u32 v30, {2*b}, v26\nv_xor_b32 v30, v30, v29\nv_lshl_add_u32 v{dst+b}, v30, 4, v28")

def norm_sum(a, dst, regs, tmp):
    a.e(f"v_mov_b32 v{dst}, 0")
    for r in regs:
        a.e(f"v_dot2_f32_bf16 v{dst}, v{r}, v{r}, v{dst}")
    a.e(f"""
    s_nop 3
    v_mov_b32 v{tmp}, v{dst}
    s_nop 1
    v_permlane32_swap_b32 v{dst}, v{tmp}
    s_nop 1
    v_add_f32 v{dst}, v{dst}, v{tmp}
    """)

def gen_pre_mlp(a, ST):
    L = V_LANE
    BF, AF, SA = 16, 40, 112
    gen_x_issue(a, ST)
    a.e(f"""
    v_mov_b32 v84, {CNT}
    v_mov_b32 v85, 1
    s_setprio 3
    """)
    a.e(f"s_and_b32 s37, s{S_W}, 1")
    xb_addr(a, L, 37, 4)
    a.e(f"""
    v_and_b32 v27, 31, v{L}
    v_cmp_eq_u32 s[46:47], 1, v27
    v_mov_b32 v28, {GW}
    v_mov_b32 v29, {XH + 73728}
    v_lshrrev_b32 v26, 5, v{L}
    v_cndmask_b32 v28, v28, v29, s[46:47]
    v_lshl_add_u32 v82, v26, 4, v28
    v_bfe_u32 v27, v{L}, 4, 1
    v_bfe_u32 v28, v{L}, 2, 2
    v_and_b32 v29, 3, v{L}
    v_lshl_add_u32 v30, v26, 3, v28          ; 8hf + r
    v_mul_u32_u24 v31, 40, v30
    v_lshl_add_u32 v31, v27, 5, v31
    v_lshl_add_u32 v31, v29, 3, v31
    v_add_u32 v77, {KVW}, v31
    v_lshlrev_b32 v78, 4, v{L}
    v_lshlrev_b32 v79, 2, v{L}
    v_mov_b32 v80, 0
    v_mov_b32 v81, 0
    """)
    mlp_setup(a)
    a.e(f"s_and_b32 s37, s{S_W}, 1")
    a.e("s_waitcnt vmcnt(10)")
    arrive(a, 84, 85, C_XL, wait=False)
    wait_cnt(a, 84, 3, C_XL, 4)
    ST.stamp('x landed')
    def chain(kind):
        def rd(s):
            st = s % 4
            r = [f"ds_read_b128 {vr(BF+4*st,4)}, v{4+(s&3)} offset:{128*(s>>2)}"]
            if kind == 0: r.append(f"ds_read_b128 {vr(AF+4*st,4)}, v82 offset:{32*s}")
            return r
        n = 2 if kind == 0 else 1
        for s_ in range(3):
            for x in rd(s_): a.e(x)
        for s_ in range(36):
            issued = min(36, s_ + 3)
            a.e(f"s_waitcnt lgkmcnt({n*(issued - s_ - 1)})")
            st = s_ % 4
            c = "0" if s_ == 0 else vr(SA,16)
            A_ = vr(AF+4*st,4) if kind == 0 else vr(BF+4*st,4)
            a.e(f"v_mfma_f32_32x32x16_bf16 {vr(SA,16)}, {A_}, {vr(BF+4*st,4)}, {c}")
            if s_ + 3 < 36:
                for x in rd(s_ + 3): a.e(x)
        a.e(f"""
        v_and_b32 v26, 31, v{L}
        s_lshl_b32 s36, s37, 5
        v_add_u32 v27, s36, v26                   ; row
        """)
        if kind == 0:
            a.e(f"""
            v_lshlrev_b32 v28, 2, v27
            v_add_u32 v28, {GBUF}, v28
            v_lshlrev_b32 v29, 3, v27
            v_add_u32 v29, {STAT}, v29
            s_nop 7
            s_mov_b32 exec_hi, 0
            ds_write_b32 v29, v{SA+1}
            s_mov_b64 exec, -1
            """)
            arrive(a, 84, 85, C_STAT)
            a.e(f"""
            v_mul_f32 v30, {hexf(-LOG2E)}, v{SA}
            v_exp_f32 v30, v30
            s_nop 0
            v_add_f32 v30, 1.0, v30
            v_rcp_f32 v30, v30
            s_mov_b32 exec_hi, 0
            s_nop 0
            ds_write_b32 v28, v30
            s_mov_b64 exec, -1
            """)
        else:
            a.e(f"""
            v_lshlrev_b32 v29, 3, v27
            v_add_u32 v29, {STAT+4}, v29
            v_and_b32 v30, 1, v26
            v_cmp_ne_u32 s[40:41], 0, v30
            v_and_b32 v30, 2, v26
            v_cmp_ne_u32 s[42:43], 0, v30
            v_and_b32 v30, 8, v26
            v_cmp_ne_u32 s[44:45], 0, v30
            v_and_b32 v30, 16, v26
            v_cmp_ne_u32 s[46:47], 0, v30
            s_nop 1
            """)
            for i in range(8): a.e(f"v_cndmask_b32 v{SA+i}, v{SA+2*i}, v{SA+2*i+1}, s[40:41]")
            for i in range(4): a.e(f"v_cndmask_b32 v{SA+i}, v{SA+2*i}, v{SA+2*i+1}, s[42:43]")
            for i in range(2): a.e(f"v_cndmask_b32 v{SA+i}, v{SA+2*i}, v{SA+2*i+1}, s[44:45]")
            a.e(f"""
            v_cndmask_b32 v{SA}, v{SA}, v{SA+1}, s[46:47]
            v_bfe_u32 v30, v26, 2, 1
            v_lshrrev_b32 v31, 5, v{L}
            v_cmp_eq_u32 s[40:41], v30, v31
            s_nop 1
            s_mov_b64 exec, s[40:41]
            ds_write_b32 v29, v{SA}
            s_mov_b64 exec, -1
            """)
            arrive(a, 84, 85, C_STAT)
    a.e(f"s_cmp_lt_u32 s{S_J}, 2\ns_cbranch_scc1 S_PROD")
    a.e(f"s_cmp_ge_u32 s{S_W}, 2\ns_cbranch_scc1 S_CH1")
    chain(0)
    a.e("s_branch S_DONE")
    a.label("S_CH1")
    chain(1)
    a.e("s_branch S_DONE")
    a.label("S_PROD")
    a.e(f"s_cmp_lt_u32 s{S_W}, 2\ns_cbranch_scc1 S_KV")
    chain(1)
    chain(0)
    a.e("s_branch S_DONE")
    a.label("S_KV")
    wait_cnt(a, 84, 3, C_KVL, 4)
    def kvloop(isK):
        def rd(s):
            st = s % 4
            return [f"ds_read_b128 {vr(BF+4*st,4)}, v{4+(s&3)} offset:{128*(s>>2)}",
                    f"ds_read_b64_tr_b16 {vr(AF+4*st,2)}, v77 offset:{s*640}",
                    f"ds_read_b64_tr_b16 {vr(AF+4*st+2,2)}, v77 offset:{s*640+160}"]
        for s in range(3):
            for x in rd(s): a.e(x)
        for s in range(36):
            issued = min(36, s + 3)
            a.e(f"s_waitcnt lgkmcnt({3*(issued - s - 1)})")
            st = s % 4
            c = "0" if s == 0 else vr(SA,16)
            if isK: a.e(f"v_mfma_f32_32x32x16_bf16 {vr(SA,16)}, {vr(AF+4*st,4)}, {vr(BF+4*st,4)}, {c}")
            else:   a.e(f"v_mfma_f32_32x32x16_bf16 {vr(SA,16)}, {vr(BF+4*st,4)}, {vr(AF+4*st,4)}, {c}")
            if s + 3 < 36:
                for x in rd(s + 3): a.e(x)
    a.e(f"""
    v_lshrrev_b32 v83, 5, v{L}
    v_cmp_eq_u32 s[42:43], 0, v83                 ; hf==0
    s_lshl_b32 s46, s{S_RB}, 1
    s_add_u32 s46, s46, s{S_W}
    s_lshl_b32 s47, s46, 12
    s_add_u32 s47, s47, {WS_KV}
    s_cmp_eq_u32 s{S_J}, 1
    s_cbranch_scc1 S_V
    s_mov_b32 s36, {WS_TAG}
    buffer_load_dword v81, v80, s[20:23], s36 offen sc1
    """)
    kvloop(True)
    arrive(a, 84, 85, C_KVD)
    a.e("s_nop 7")
    B = 128
    for d in range(5):
        a.e(f"v_cvt_pk_bf16_f32 v{B+d}, v{SA+2*d}, v{SA+2*d+1}")
    a.e(f"v_cndmask_b32 v{B+4}, 0, v{B+4}, s[42:43]")
    norm_sum(a, B+5, [B, B+1, B+2, B+3, B+4], B+6)
    a.e(f"""
    v_mov_b32 v83, 0x3f803f80
    v_cndmask_b32 v{B+4}, v83, v{B+4}, s[42:43]
    buffer_store_dwordx4 {vr(B,4)}, v78, s[20:23], s47 offen sc1
    buffer_store_dword v{B+4}, v79, s[20:23], s47 offen offset:3072 sc1
    """)
    for pat in ["quad_perm:[1,0,3,2]", "quad_perm:[2,3,0,1]", "row_ror:4", "row_ror:8"]:
        a.e(f"v_max_f32_dpp v{B+5}, v{B+5}, v{B+5} {pat} row_mask:0xf bank_mask:0xf\ns_nop 1")
    a.e(f"""
    ds_swizzle_b32 v{B+6}, v{B+5} offset:{(16<<10)|0x1f}
    s_waitcnt lgkmcnt(0)
    v_max_f32 v{B+5}, v{B+5}, v{B+6}
    s_lshl_b32 s46, s46, 2
    s_add_u32 s46, s46, {WS_KMAX}
    s_mov_b64 exec, 1
    buffer_store_dword v{B+5}, v80, s[20:23], s46 offen sc1
    s_mov_b64 exec, -1
    s_branch S_KVST
    """)
    a.label("S_V")
    kvloop(False)
    arrive(a, 84, 85, C_KVD)
    a.e(f"""
    v_and_b32 v83, 31, v{L}
    v_mov_b32 v81, 0x3f803f80
    v_cmp_eq_u32 s[40:41], 18, v83
    v_cmp_lt_u32 s[44:45], 18, v83
    s_nop 3
    """)
    for d in range(8):
        a.e(f"v_cvt_pk_bf16_f32 v{B+d}, v{SA+2*d}, v{SA+2*d+1}")
    for d in range(8):
        a.e(f"v_cndmask_b32 v{B+d}, v{B+d}, v81, s[40:41]")
    for d in range(8):
        a.e(f"v_cndmask_b32 v{B+d}, v{B+d}, 0, s[44:45]")
    a.e(f"""
    buffer_store_dwordx4 {vr(B,4)}, v78, s[20:23], s47 offen offset:1024 sc1
    buffer_store_dwordx4 {vr(B+4,4)}, v78, s[20:23], s47 offen offset:2048 sc1
    """)
    a.label("S_KVST")
    ST.stamp('KV st')
    a.e(f"""
    s_waitcnt vmcnt(0)
    s_mov_b64 exec, 1
    ds_add_rtn_u32 v83, v84, v85 offset:{C_KVS}
    s_waitcnt lgkmcnt(0)
    v_readfirstlane_b32 s46, v83
    s_cmp_lg_u32 s46, 1
    s_cbranch_scc1 S_FLD
    v_mov_b32 v83, 1
    s_cmp_lg_u32 s3, 0
    s_cbranch_scc1 S_FLV
    v_add_u32 v83, 1, v81
    v_cmp_eq_u32 s[40:41], 0, v83
    s_mov_b32 s46, {WS_TAG}
    s_nop 0
    v_cndmask_b32 v83, v83, 1, s[40:41]
    s_nop 0
    buffer_store_dword v83, v80, s[20:23], s46 offen sc1
    """)
    a.label("S_FLV")
    a.e(f"""
    s_lshl_b32 s46, s{S_RB}, 3
    s_lshl_b32 s47, s{S_J}, 2
    s_add_u32 s46, s46, s47
    v_mov_b32 v3, s46
    global_store_dword v3, v83, s[60:61] sc1
    """)
    a.label("S_FLD")
    a.e("s_mov_b64 exec, -1")
    ST.stamp('KV pub')
    a.label("S_DONE")
    a.e("s_setprio 0")
    ST.stamp('pre done')

def gen_proj_att(a, ST):
    L = V_LANE
    XF, ACC, AF = 64, 208, 16
    a.e("s_setprio 2")
    a.e(f"""
    s_and_b32 s{S_RT}, s{S_W}, 1
    s_lshr_b32 s{S_KH}, s{S_W}, 1
    s_mov_b32 s41, {(2**32 + 11)//12}
    v_mov_b32 v14, {CNT}
    v_mov_b32 v15, 1
    s_and_b32 s44, s{S_J}, 3
    s_lshl_b32 s44, s44, 4               ; shift = 16*(j&3)
    s_mul_i32 s45, s{S_J}, 144
    s_sub_u32 s45, s45, s44
    """)
    if WQPF:
        share = 1152 // NSH
        a.e(f"""
        s_and_b32 s46, s{S_RB}, {NSH-1}
        s_mul_i32 s46, s46, {share}
        s_add_u32 s47, s46, {share-1}
        s_lshl_b32 s43, s{S_W}, 6
        s_add_u32 s46, s46, s43
        v_add_u32 v26, s46, v{L}
        v_min_u32 v26, s47, v26
        v_lshrrev_b32 v27, 1, v26
        v_and_b32 v26, 1, v26
        v_mul_u32_u24 v27, 1152, v27
        v_mul_u32_u24 v26, 188, v26
        v_add3_u32 v26, v26, v27, s45
        s_waitcnt lgkmcnt(0)
        global_load_dword v13, v26, s[50:51]
        """)
    for b in range(3):
        a.e(f"""
        s_add_u32 s46, s{S_W}, {4*b}
        s_lshl_b32 s46, s46, 6
        v_add_u32 v26, s46, v{L}
        v_mul_hi_u32 v27, v26, s41         ; row
        v_mul_u32_u24 v3, 12, v27
        v_sub_u32 v26, v26, v3             ; c
        v_mul_u32_u24 v27, 1152, v27
        v_lshl_add_u32 v27, v26, 4, v27
        v_add_u32 v{8+b}, s45, v27
        """)
    a.e(f"""
    v_lshrrev_b32 v26, 5, v{L}
    v_bfe_u32 v27, v{L}, 4, 1
    v_bfe_u32 v28, v{L}, 2, 2
    v_and_b32 v29, 3, v{L}
    v_lshl_add_u32 v30, v26, 3, v28          ; 8hf + r
    v_mul_u32_u24 v30, 192, v30
    v_lshl_add_u32 v30, v27, 5, v30
    v_lshl_add_u32 v30, v29, 3, v30
    s_mul_i32 s46, s{S_KH}, 72
    s_add_u32 s46, s46, s44
    s_add_u32 s46, s46, {PC0}
    v_add_u32 v11, s46, v30
    v_add_u32 v12, 32, v11
    """)
    xb_addr(a, L, S_RT, 4)
    a.e(f"s_mov_b32 s40, {(2**32 + 9)//10}")
    for b in range(5):
        a.e(f"""
        s_add_u32 s46, s{S_W}, {4*b}
        s_lshl_b32 s46, s46, 6
        v_add_u32 v26, s46, v{L}
        v_mul_hi_u32 v27, v26, s40
        v_mul_u32_u24 v3, 10, v27
        v_sub_u32 v26, v26, v3
        v_min_u32 v26, 8, v26
        v_mul_u32_u24 v27, 36, v27
        v_lshl_add_u32 v{48+b}, v26, 2, v27
        """)
    zero_counters(a)
    a.e("s_waitcnt lgkmcnt(0)\ns_barrier")
    mk_srd(a, 20, 62, 63, 0x10000000)
    def cbuf(c): return PC0 + (c % 3) * PCH
    def issue_c(c, tag):
        for i in range(7):
            aa, b = divmod(i, 3)
            if i == 6: a.e(f"s_cmp_ge_u32 s{S_W}, 3\ns_cbranch_scc1 PW_SKIP_{tag}")
            a.e(f"""
            s_lshl_b32 s46, s{S_W}, 10
            s_add_u32 m0, s46, {cbuf(c) + i*4096}
            s_mov_b32 s47, {c*144*1152 + aa*64*1152}
            buffer_load_dwordx4 v{8+b}, s[24:27], s47 offen lds
            """)
        a.label(f"PW_SKIP_{tag}")
    a.e(f"""
    s_cmp_ge_u32 s{S_J}, 2
    s_cbranch_scc1 PA_NOKVI
    s_cmp_eq_u32 s{S_J}, 1
    s_cselect_b32 s42, s54, s52
    s_cselect_b32 s43, s55, s53
    """)
    mk_srd(a, 24, 42, 43, 576*36)
    for i in range(23):
        aa, b = divmod(i, 5)
        if i == 22: a.e(f"s_cmp_ge_u32 s{S_W}, 2\ns_cbranch_scc1 PA_KVI2")
        a.e(f"""
        s_lshl_b32 s46, s{S_W}, 8
        s_add_u32 m0, s46, {KVW + i*1024}
        s_mov_b32 s47, {aa*128*36}
        buffer_load_dword v{48+b}, s[24:27], s47 offen lds
        """)
    a.label("PA_KVI2")
    mk_srd(a, 24, 50, 51, 576*1152)
    issue_c(0, "a0"); issue_c(1, "a1")
    a.e("s_branch PA_ISS")
    a.label("PA_NOKVI")
    mk_srd(a, 24, 50, 51, 576*1152)
    issue_c(0, 'b0'); issue_c(1, 'b1'); issue_c(2, 'b2')
    a.label("PA_ISS")
    ST.stamp('W iss')
    if TOUCH:
        a.e(f"""
        s_load_dwordx2 s[40:41], s[0:1], 32      ; wo
        s_load_dwordx4 s[44:47], s[0:1], 48      ; w1, b1
        s_load_dwordx4 s[52:55], s[0:1], 64      ; w2, b2
        s_load_dwordx2 s[42:43], s[0:1], 88      ; out
        s_waitcnt lgkmcnt(0)
        s_cmp_eq_u32 s{S_W}, 3
        s_cbranch_scc1 E_T7
        s_and_b32 s36, s{S_RB}, {NSH-1}
        s_lshl_b32 s36, s36, 6
        s_min_u32 s37, s{S_W}, 1
        s_mul_i32 s37, s37, {64*NSH}
        s_add_u32 s36, s36, s37
        v_add_u32 v26, s36, v{L}
        s_mov_b32 s36, {(2**32 + 8)//9}
        v_mul_hi_u32 v27, v26, s36
        v_mul_u32_u24 v28, 9, v27
        v_sub_u32 v26, v26, v28
        v_mul_u32_u24 v27, 9216, v27
        v_lshl_add_u32 v26, v26, 7, v27
        s_mul_i32 s37, s{S_J}, 1152
        v_add_u32 v26, s37, v26
        global_load_dword v13, v26, s[44:45]
        s_branch E_NOT
        """)
        a.label("E_T7")
        a.e(f"""
        s_mul_i32 s36, s{S_J}, {576*1152}
        s_add_u32 s52, s52, s36
        s_addc_u32 s53, s53, 0
        s_mul_i32 s36, s{S_J}, {72*1152}
        s_add_u32 s40, s40, s36
        s_addc_u32 s41, s41, 0
        s_mul_i32 s36, s{S_RB}, {64*1152}
        s_add_u32 s42, s42, s36
        s_addc_u32 s43, s43, 0
        s_mul_i32 s36, s3, {72*1024}
        s_add_u32 s36, s36, {WS_PART}
        s_add_u32 s44, s62, s36
        s_addc_u32 s45, s63, 0
        v_mov_b32 v26, s62
        v_mov_b32 v27, s63
        v_writelane_b32 v26, s52, 0
        v_writelane_b32 v27, s53, 0
        v_writelane_b32 v26, s40, 1
        v_writelane_b32 v27, s41, 1
        v_writelane_b32 v26, s46, 2
        v_writelane_b32 v27, s47, 2
        v_writelane_b32 v26, s54, 3
        v_writelane_b32 v27, s55, 3
        v_writelane_b32 v26, s42, 4
        v_writelane_b32 v27, s43, 4
        v_writelane_b32 v26, s44, 6
        v_writelane_b32 v27, s45, 6
        s_mov_b64 exec, 0xff
        global_load_dword v13, v[26:27], off
        s_mov_b64 exec, -1
        """)
        a.label("E_NOT")
    NT = 1 if TOUCH else 0
    a.e(f"s_cmp_ge_u32 s{S_J}, 2\ns_cbranch_scc1 PA_XW\ns_waitcnt vmcnt({12 + NT})")
    arrive(a, 14, 15, C_KVL, wait=False)
    a.label("PA_XW")
    wait_cnt(a, 14, 3, C_XL, 4)
    ST.stamp('x landed')
    def xrd(S_): return f"ds_read_b128 {vr(XF+4*S_,4)}, v{4+(S_&3)} offset:{128*(S_>>2)}"
    for S_ in range(12): a.e(xrd(S_))
    ST.stamp('Q start')
    tgt = [4]
    def wsync(vm):
        a.e(f"s_waitcnt vmcnt({vm})")
        arrive(a, 14, 15, C_PW, wait=True)
        wait_cnt(a, 14, 3, C_PW, tgt[0]); tgt[0] += 4
    def compute(q):
        a.e(f"v_add_u32 v2, {cbuf(q) - PC0}, v11\nv_add_u32 v48, {cbuf(q) - PC0}, v12")
        def rd(s):
            st = s % 4
            return [f"ds_read_b64_tr_b16 {vr(AF+8*st,2)}, v2 offset:{s*3072}",
                    f"ds_read_b64_tr_b16 {vr(AF+8*st+2,2)}, v2 offset:{s*3072+768}",
                    f"ds_read_b64_tr_b16 {vr(AF+8*st+4,2)}, v48 offset:{s*3072}",
                    f"ds_read_b64_tr_b16 {vr(AF+8*st+6,2)}, v48 offset:{s*3072+768}"]
        D = 3
        for s in range(D):
            for x in rd(s): a.e(x)
        for s in range(9):
            issued = min(9, s + D)
            a.e(f"s_waitcnt lgkmcnt({4*(issued - s - 1)})")
            st = s % 4; S_ = 9*q + s
            c0 = "0" if S_ == 0 else vr(ACC,16); c1 = "0" if S_ == 0 else vr(ACC+16,16)
            a.e(f"v_mfma_f32_32x32x16_bf16 {vr(ACC,16)}, {vr(AF+8*st,4)}, {vr(XF+4*S_,4)}, {c0}")
            a.e(f"v_mfma_f32_32x32x16_bf16 {vr(ACC+16,16)}, {vr(AF+8*st+4,4)}, {vr(XF+4*S_,4)}, {c1}")
            if s + D < 9:
                for x in rd(s + D): a.e(x)
    def compute0():
        a.e(f"v_add_u32 v2, {cbuf(0) - PC0}, v11\nv_add_u32 v48, {cbuf(0) - PC0}, v12")
        def rd(s):
            st = s % 4
            return [f"ds_read_b64_tr_b16 {vr(AF+8*st,2)}, v2 offset:{s*3072}",
                    f"ds_read_b64_tr_b16 {vr(AF+8*st+2,2)}, v2 offset:{s*3072+768}",
                    f"ds_read_b64_tr_b16 {vr(AF+8*st+4,2)}, v48 offset:{s*3072}",
                    f"ds_read_b64_tr_b16 {vr(AF+8*st+6,2)}, v48 offset:{s*3072+768}"]
        for s in range(2):
            for x in rd(s): a.e(x)
        nx = 12
        for s in range(9):
            extra = []
            if s + 2 < 9: extra += rd(s + 2)
            k = min(3, 36 - nx)
            xs = [xrd(nx + i) for i in range(k)]; nx += k
            after = (4 if s + 1 < 9 else 0) + (self_prev[0])
            a.e(f"s_waitcnt lgkmcnt({min(15, after)})")
            st = s % 4
            c0 = "0" if s == 0 else vr(ACC,16); c1 = "0" if s == 0 else vr(ACC+16,16)
            a.e(f"v_mfma_f32_32x32x16_bf16 {vr(ACC,16)}, {vr(AF+8*st,4)}, {vr(XF+4*s,4)}, {c0}")
            a.e(f"v_mfma_f32_32x32x16_bf16 {vr(ACC+16,16)}, {vr(AF+8*st+4,4)}, {vr(XF+4*s,4)}, {c1}")
            for x in xs: a.e(x)
            for x in extra: a.e(x)
            self_prev[0] = k if s + 1 < 9 else 0
        assert nx == 36
    self_prev = [0]
    a.e(f"s_cmp_ge_u32 s{S_J}, 2\ns_cbranch_scc1 PA_V12\ns_waitcnt vmcnt({6+NT})\ns_branch PA_VD")
    a.label("PA_V12")
    a.e(f"s_waitcnt vmcnt({12+NT})")
    a.label("PA_VD")
    wsync(63)
    compute0()
    arrive(a, 14, 15, C_XR)
    a.e(f"s_cmp_ge_u32 s{S_J}, 2\ns_cbranch_scc1 PA_GO")
    wait_cnt(a, 14, 3, C_KVD, 2)
    issue_c(2, 'a2')
    a.label("PA_GO")
    wsync(6)
    issue_c(3, "q3")
    compute(1)
    wsync(6)
    compute(2)
    wsync(0)
    compute(3)
    arrive(a, 14, 15, C_P)
    ST.stamp('P computed')

V_B, V_BX, V_A, V_AX, V_OM, V_OX = 2, 6, 8, 12, 13, 14
V_T = 15
SETA = [16, 40]; SETB = [32, 56]
AX, BX = 64, 68
V_CNT, V_ONE = 84, 85
V_G = 86
V_OM2, V_OX2 = 92, 93
V_OMW, V_OMWH, V_OOB = 94, 95, 96
V_OXW = 97
V_BI = 100
ACC = 112
def acc(t, rt): return ACC + (t * 2 + rt) * 16
def accx(rt, rh): return 240 + (rt * 2 + rh) * 4

def merge(x, y):
    if not y: return list(x)
    if not x: return list(y)
    out = []; step = len(x) / len(y); yi = 0
    for i, e in enumerate(x):
        out.append(e)
        while yi < len(y) and (yi + 0.5) * step <= i + 1:
            out.append(y[yi]); yi += 1
    while yi < len(y):
        out.append(y[yi]); yi += 1
    return out

class GemmGen:
    def __init__(self, a, mode):
        self.a = a
        self.mode = mode
        self.perm = (mode == 'h')
    def b_main(self, dst, rel):
        if self.mode == 'x':
            return [f"ds_read_b128 {vr(SETB[dst]+4*rt,4)}, v{V_B+(rel&3)} offset:{128*(rel>>2) + rt*36864}" for rt in range(2)]
        return [f"ds_read_b128 {vr(SETB[dst]+4*rt,4)}, v{V_B} offset:{rel*KS + rt*1024}" for rt in range(2)]
    def b_extra(self, rel):
        L = []
        for rt in range(2):
            for rh in range(2):
                if self.mode == 'x':
                    e = (rel >> 1) & 1
                    L.append(f"ds_read_b128 {vr(BX+4*(2*rt+rh),4)}, v{V_BX+e} offset:{128*(rel>>2) + (32*rt+16*rh)*1152}")
                else:
                    L.append(f"ds_read_b128 {vr(BX+4*(2*rt+rh),4)}, v{V_BX} offset:{rel*KS + rt*1024 + rh*256}")
        return L
    def reads_main(self, b, ks, dst, rel):
        L = self.b_main(dst, rel)
        second = 2048 if self.perm else 1024
        for t in range(4):
            base = b * SLABS + ks * 4096
            L.append(f"ds_read_b64_tr_b16 {vr(SETA[dst]+4*t,2)}, v{V_A+t} offset:{base}")
            L.append(f"ds_read_b64_tr_b16 {vr(SETA[dst]+4*t+2,2)}, v{V_A+t} offset:{base+second}")
        return L
    def reads_extra(self, b, rel):
        second = 256 if self.perm else 128
        L = [f"ds_read_b64_tr_b16 {vr(AX,2)}, v{V_AX} offset:{b*SLABS + 8192}",
             f"ds_read_b64_tr_b16 {vr(AX+2,2)}, v{V_AX} offset:{b*SLABS + 8192 + second}"]
        return L + self.b_extra(rel)
    def mfmas_main(self, src):
        return [f"v_mfma_f32_32x32x16_bf16 {vr(acc(t,rt),16)}, {vr(SETA[src]+4*t,4)}, {vr(SETB[src]+4*rt,4)}, {vr(acc(t,rt),16)}"
                for t in range(4) for rt in range(2)]
    def mfmas_extra(self):
        return [f"v_mfma_f32_16x16x32_bf16 {vr(accx(rt,rh),4)}, {vr(AX,4)}, {vr(BX+4*(2*rt+rh),4)}, {vr(accx(rt,rh),4)}"
                for rt in range(2) for rh in range(2)]
    def interleave(self, mf, others):
        a = self.a; n = len(mf); k = 0
        per = -(-len(others) // n) if n else 0
        for m in mf:
            a.e(m)
            for _ in range(per):
                if k < len(others):
                    a.e(others[k]); k += 1
        while k < len(others):
            a.e(others[k]); k += 1
    def dstep(self, b, rel, dma0, dma1, vm0, vm1, next_reads=True):
        a = self.a
        a.e(f"s_waitcnt vmcnt({vm0}) lgkmcnt(0)" if vm0 is not None else "s_waitcnt lgkmcnt(0)")
        rd = self.reads_main(b, 1, 1, rel + 1) + self.reads_extra(b, rel)
        self.interleave(self.mfmas_main(0), merge(rd, dma0))
        a.e(f"s_waitcnt vmcnt({vm1}) lgkmcnt(0)" if vm1 is not None else "s_waitcnt lgkmcnt(0)")
        rd = self.reads_main(1 - b, 0, 0, rel + 2) if next_reads else []
        self.interleave(self.mfmas_main(1) + self.mfmas_extra(), merge(rd, dma1))
    def advance(self):
        a = self.a
        if self.mode == 'x':
            for b in range(4): a.e(f"v_add_u32 v{V_B+b}, 128, v{V_B+b}")
            for e in range(2): a.e(f"v_add_u32 v{V_BX+e}, 128, v{V_BX+e}")
        else:
            a.e(f"v_add_u32 v{V_B}, {4*KS}, v{V_B}\nv_add_u32 v{V_BX}, {4*KS}, v{V_BX}")

def dma_regular(b, phase, vom, vox):
    L = []
    for p in (range(4) if phase == 0 else range(4, 8)):
        L.append(f"s_add_u32 m0, s{S_M0B}, {b*SLABS + p*1024}\ns_nop 0\nbuffer_load_dwordx4 v{vom}, s[4:7], s{S_OFF} offen lds\ns_add_u32 s{S_OFF}, s{S_OFF}, s{S_STEP}")
    if phase == 1:
        L.append(f"s_add_u32 m0, s{S_M0B}, {b*SLABS + 8192}\ns_lshl_b32 s{S_T0}, s{S_STEP}, 3\ns_sub_u32 s{S_T0}, s{S_OFF}, s{S_T0}\nbuffer_load_dwordx4 v{vox}, s[4:7], s{S_T0} offen lds")
    return L
def dma_wo(slab, b, phase):
    L = []
    for pp in (range(4) if phase == 0 else range(4, 8)):
        p = 8 * slab + pp
        m = p % 6
        so = (18 * (p // 6) + 4 * m) * 1152
        voff = V_OMW if m <= 3 else (V_OMWH if m == 4 else V_OOB)
        if m == 5: so = 0
        L.append(f"s_add_u32 m0, s{S_M0B}, {b*SLABS + pp*1024}\ns_mov_b32 s{S_T0}, {so}\nbuffer_load_dwordx4 v{voff}, s[16:19], s{S_T0} offen lds")
    if phase == 1:
        L.append(f"s_add_u32 m0, s{S_M0B}, {b*SLABS + 8192}\ns_nop 0\nbuffer_load_dwordx4 v{V_OXW+slab}, s[16:19], 0 offen lds")
    return L

def gen_reduce(a, ST, wave_expr_sgpr, vb=16):
    L = V_LANE
    a.e(f"""
    s_load_dwordx2 s[48:49], s[0:1], 88
    v_mov_b32 v{vb+2}, {CNT}
    v_mov_b32 v{vb+3}, 1
    v_lshlrev_b32 v{vb+4}, 4, v{L}
    s_waitcnt lgkmcnt(0)
    """)
    mk_srd(a, 24, 48, 49, 2048*576*2)
    def prep(blk_expr, sL, sS, sX, vS):
        a.e(f"""
        s_mul_i32 s{S_T0}, s{S_J}, 9
        s_add_u32 s{S_T0}, s{S_T0}, {blk_expr}        ; bi
        s_lshl_b32 s{S_T1}, s{S_RB}, 3
        s_mul_i32 s{S_T1}, s{S_T1}, {72*1024}
        s_lshl_b32 s{S_T2}, s{S_T0}, 10
        s_add_u32 s{S_T1}, s{S_T1}, s{S_T2}
        s_add_u32 s{sL}, s{S_T1}, {WS_PART}
        s_mul_hi_u32 s40, s{S_T0}, {(2**32+17)//18}      ; wsrc
        s_mul_i32 s41, s40, 18
        s_sub_u32 s41, s{S_T0}, s41                      ; pair
        s_lshl_b32 s42, s{S_RB}, 6
        s_cmp_ge_u32 s41, 16
        s_cselect_b32 s{sX}, 1, 0
        """)
        LX = a.newlabel("RX"); LD = a.newlabel("RD")
        a.e(f"""
        s_cbranch_scc1 {LX}
        s_lshr_b32 s44, s41, 1               ; t*2+rt
        s_and_b32 s45, s44, 1                ; rt
        s_lshr_b32 s44, s44, 1               ; t
        s_lshl_b32 s45, s45, 5
        s_add_u32 s42, s42, s45
        s_mul_i32 s42, s42, 1152
        s_lshl_b32 s45, s40, 8
        s_add_u32 s42, s42, s45
        s_lshl_b32 s45, s44, 6
        s_add_u32 s42, s42, s45
        s_and_b32 s45, s41, 1
        s_lshl_b32 s45, s45, 5
        s_add_u32 s{sS}, s42, s45
        v_and_b32 v{vS}, 31, v{L}
        v_mul_u32_u24 v{vS}, 1152, v{vS}
        v_lshrrev_b32 v{vb}, 5, v{L}
        v_lshl_add_u32 v{vS}, v{vb}, 4, v{vS}
        s_branch {LD}
        """)
        a.label(LX)
        a.e(f"""
        s_sub_u32 s45, s41, 16               ; rt
        s_lshl_b32 s45, s45, 5
        s_add_u32 s42, s42, s45
        s_mul_i32 s42, s42, 1152
        s_lshl_b32 s45, s40, 5
        s_add_u32 s42, s42, s45
        s_add_u32 s{sS}, s42, 1024
        v_and_b32 v{vS}, 15, v{L}
        v_mul_u32_u24 v{vS}, 1152, v{vS}
        v_lshrrev_b32 v{vb}, 4, v{L}
        v_lshl_add_u32 v{vS}, v{vb}, 3, v{vS}
        """)
        a.label(LD)
    def loads(D, sL):
        for js in range(8):
            a.e(f"buffer_load_dwordx4 {vr(D+4*js,4)}, v{vb+4}, s[20:23], s{sL} offen sc1")
            if js < 7: a.e(f"s_add_u32 s{sL}, s{sL}, {72*1024}")
    def finish(D, sS, sX, vS, younger):
        A = vb + 80; T = A + 8
        for js in range(8):
            a.e(f"s_waitcnt vmcnt({7-js+younger})")
            for d in range(4):
                src = D + 4*js + d
                if js == 0:
                    a.e(f"v_lshlrev_b32 v{A+2*d}, 16, v{src}\nv_and_b32 v{A+2*d+1}, 0xffff0000, v{src}")
                else:
                    a.e(f"v_lshlrev_b32 v{T+2*d}, 16, v{src}\nv_and_b32 v{T+2*d+1}, 0xffff0000, v{src}")
            if js:
                for d in range(4):
                    a.e(f"v_pk_add_f32 {vr(A+2*d,2)}, {vr(A+2*d,2)}, {vr(T+2*d,2)}")
        for d in range(4):
            a.e(f"v_cvt_pk_bf16_f32 v{T+d}, v{A+2*d}, v{A+2*d+1}")
        LX2 = a.newlabel("RX"); LD2 = a.newlabel("RD")
        a.e(f"""
        s_cmp_eq_u32 s{sX}, 1
        s_cbranch_scc1 {LX2}
        s_nop 0
        v_permlane32_swap_b32 v{T}, v{T+2}
        v_permlane32_swap_b32 v{T+1}, v{T+3}
        s_nop 1
        buffer_store_dwordx4 {vr(T,4)}, v{vS}, s[24:27], s{sS} offen
        s_branch {LD2}
        """)
        a.label(LX2)
        a.e(f"""
        s_add_u32 s45, s{sS}, {16*1152}
        buffer_store_dwordx2 {vr(T,2)}, v{vS}, s[24:27], s{sS} offen
        buffer_store_dwordx2 {vr(T+2,2)}, v{vS}, s[24:27], s45 offen
        """)
        a.label(LD2)
    prep(f"s{wave_expr_sgpr}", 50, 51, 52, vb+5)
    prep("8", 53, 54, 55, vb+6)
    P1 = a.newlabel("XFP"); P2 = a.newlabel("XFD"); P3 = a.newlabel("XFW")
    a.e(f"""
    s_cmp_lg_u32 s{wave_expr_sgpr}, 7
    s_cbranch_scc1 {P3}
    s_lshl_b32 s{S_T0}, s{S_RB}, 7
    s_add_u32 s{S_T0}, s{S_T0}, {WS_XF}
    v_and_b32 v{vb}, 7, v{L}
    v_lshlrev_b32 v{vb}, 2, v{vb}
    s_mov_b32 s39, 0x100000
    """)
    a.label(P1)
    a.e(f"""
    buffer_load_dword v{vb+1}, v{vb}, s[20:23], s{S_T0} offen sc1
    s_waitcnt vmcnt(0)
    v_cmp_ne_u32 vcc, s47, v{vb+1}
    s_nop 1
    s_cmp_eq_u64 vcc, 0
    s_cbranch_scc1 {P2}
    s_sleep 1
    s_sub_u32 s39, s39, 1
    s_cmp_lg_u32 s39, 0
    s_cbranch_scc1 {P1}
    """)
    a.label(P2)
    arrive(a, vb+2, vb+3, C_XF, wait=False)
    a.label(P3)
    wait_cnt(a, vb+2, vb, C_XF, 1)
    ST.stamp('flags ok')
    D1, D2 = vb + 8, vb + 40
    LE = a.newlabel("RE"); L2 = a.newlabel("R2")
    loads(D1, 50)
    a.e(f"s_cmp_eq_u32 s{wave_expr_sgpr}, 4\ns_cbranch_scc1 {L2}")
    finish(D1, 51, 52, vb+5, 0)
    a.e(f"s_branch {LE}")
    a.label(L2)
    loads(D2, 53)
    finish(D1, 51, 52, vb+5, 8)
    finish(D2, 54, 55, vb+6, 1)
    a.label(LE)


def setup_a(a, perm):
    L = V_LANE
    a.e(f"""
    v_lshrrev_b32 v16, 5, v{L}               ; hf
    v_bfe_u32 v17, v{L}, 4, 1                ; chalf
    v_bfe_u32 v18, v{L}, 2, 2                ; r
    v_and_b32 v19, 3, v{L}                   ; c
    v_lshl_add_u32 v20, v16, {2 if perm else 3}, v18
    v_lshlrev_b32 v20, 8, v20
    v_lshl_add_u32 v20, v17, 5, v20
    v_lshl_add_u32 v20, v19, 3, v20
    v_add_u32 v20, s{S_M0B}, v20
    """)
    for t in range(4):
        a.e(f"v_xor_b32 v21, {t}, v18\nv_lshl_add_u32 v{V_A+t}, v21, 6, v20")
    if perm:
        a.e(f"v_lshlrev_b32 v21, 4, v16\nv_lshl_add_u32 v21, v17, 2, v21\nv_add_u32 v21, v21, v18")
    else:
        a.e(f"v_lshrrev_b32 v21, 4, v{L}\nv_lshl_add_u32 v21, v21, 3, v18")
    a.e(f"""
    v_lshlrev_b32 v21, 5, v21
    v_lshl_add_u32 v21, v19, 3, v21
    v_add_u32 v{V_AX}, s{S_M0B}, v21
    """)

def mlp_setup(a):
    L = V_LANE
    a.e(f"""
    s_load_dwordx2 s[48:49], s[0:1], 32      ; wo
    s_load_dwordx2 s[54:55], s[0:1], 56      ; b1
    s_load_dwordx4 s[56:59], s[0:1], 64      ; w2, b2
    """)
    if PRIO_MLP: a.e(f"s_setprio {PRIO_MLP}")
    a.e(f"""
    v_lshrrev_b32 v16, 4, v{L}               ; l>>4
    v_and_b32 v17, 15, v{L}                  ; i
    v_lshlrev_b32 v18, 2, v16
    v_xor_b32 v18, v17, v18
    v_lshlrev_b32 v18, 4, v18
    s_lshl_b32 s{S_T1}, s{S_W}, 8
    v_add_u32 v18, s{S_T1}, v18              ; swz + 256w
    v_mul_u32_u24 v19, 1152, v16
    v_add_u32 v{V_OM2}, v19, v18
    v_mov_b32 v{V_OMW}, v{V_OM2}
    v_mov_b32 v{V_OOB}, 0x80000000
    v_cmp_gt_u32 s[40:41], 2, v16
    v_lshrrev_b32 v20, 1, v{L}               ; row 0..31
    v_and_b32 v21, 1, v{L}
    v_cndmask_b32 v{V_OMWH}, v{V_OOB}, v{V_OM2}, s[40:41]
    v_lshlrev_b32 v21, 4, v21
    s_lshl_b32 s{S_T1}, s{S_W}, 5
    s_add_u32 s{S_T1}, s{S_T1}, 1024
    v_add_u32 v21, s{S_T1}, v21              ; 1024 + 32w + 16(l&1)
    v_mul_u32_u24 v22, 1152, v20
    v_add_u32 v{V_OX2}, v22, v21
    s_waitcnt lgkmcnt(0)
    """)
    a.e(f"""
    s_mul_i32 s{S_T0}, s{S_J}, {576*1152}
    s_add_u32 s56, s56, s{S_T0}
    s_addc_u32 s57, s57, 0
    """)
    mk_srd(a, 12, 56, 57, 576*1152)
    a.e(f"""
    s_mul_i32 s{S_T0}, s{S_J}, {72*1152}
    s_add_u32 s48, s48, s{S_T0}
    s_addc_u32 s49, s49, 0
    """)
    mk_srd(a, 16, 48, 49, 72*1152)
    mk_srd(a, 20, 62, 63, 0x10000000)
    a.e(f"""
    v_and_b32 v22, 31, v{L}
    v_lshlrev_b32 v22, 1, v22
    v_cmp_gt_u32 vcc, 32, v{L}
    v_and_b32 v23, 15, v{L}
    v_lshlrev_b32 v23, 1, v23
    v_cndmask_b32 v22, v{V_OOB}, v22, vcc
    v_cmp_gt_u32 vcc, 16, v{L}
    s_mul_i32 s{S_T0}, s{S_J}, 1152
    s_lshl_b32 s{S_T1}, s{S_W}, 8
    v_cndmask_b32 v23, v{V_OOB}, v23, vcc
    s_add_u32 s{S_T0}, s{S_T0}, s{S_T1}       ; (576j + 128w)*2
    """)
    mk_srd(a, 24, 54, 55, 4608*2)
    for t in range(4):
        a.e(f"buffer_load_ushort v{V_BI+t}, v22, s[24:27], s{S_T0} offen offset:{64*t}")
    a.e(f"""
    s_mul_i32 s{S_T0}, s{S_J}, 1152
    s_lshl_b32 s{S_T2}, s{S_W}, 5
    s_add_u32 s{S_T0}, s{S_T0}, s{S_T2}
    s_add_u32 s{S_T0}, s{S_T0}, 1024
    buffer_load_ushort v{V_BI+4}, v23, s[24:27], s{S_T0} offen
    s_cmp_eq_u32 s{S_J}, 0
    s_cselect_b32 s{S_T3}, {576*2}, 0
    """)
    mk_srd(a, 24, 58, 59, f"s{S_T3}")
    for t in range(4):
        a.e(f"buffer_load_ushort v{V_BI+5+t}, v22, s[24:27], s{S_T1} offen offset:{64*t}")
    a.e(f"""
    s_add_u32 s{S_T2}, s{S_T2}, 1024
    buffer_load_ushort v{V_BI+9}, v23, s[24:27], s{S_T2} offen
    """)
    for sl in range(3):
        a.e(f"""
        v_add_u32 v22, {32*sl}, v20
        v_mul_u32_u24 v23, 2731, v22
        v_lshrrev_b32 v23, 16, v23
        v_mul_u32_u24 v24, 24, v23
        v_sub_u32 v24, v22, v24
        v_mul_u32_u24 v23, 18, v23
        v_add_u32 v23, v23, v24
        v_mul_u32_u24 v23, 1152, v23
        v_add_u32 v23, v23, v21
        v_cmp_gt_u32 vcc, 18, v24
        s_nop 1
        v_cndmask_b32 v{V_OXW+sl}, v{V_OOB}, v23, vcc
        """)
    setup_a(a, False)

def gen_mlp(a, ST):
    L = V_LANE
    ST.stamp('mlp setup')
    X = 112
    a.e(f"""
    v_lshrrev_b32 v16, 4, v{L}               ; rr
    v_and_b32 v17, 15, v{L}                  ; i
    v_cmp_gt_u32 s[40:41], 8, v17
    s_lshl_b32 s{S_T0}, s{S_W}, 4
    v_add_u32 v18, s{S_T0}, v16              ; 16w + rr
    v_lshlrev_b32 v76, 3, v18
    v_add_u32 v76, {STAT}, v76
    v_mul_u32_u24 v18, 1152, v18
    v_lshl_add_u32 v72, v17, 4, v18
    s_mov_b32 s42, {hexf(1.0/576)}
    """)
    for q in range(4):
        for p in range(5):
            a.e(f"ds_read_b128 {vr(X+(q*5+p)*4,4)}, v72 offset:{XH + q*4608 + p*256}")
        if q == 1: a.e("s_waitcnt lgkmcnt(0)")
    arrive(a, V_CNT, V_ONE, C_XR)
    wait_cnt(a, V_CNT, V_T, C_STAT, 4)
    ST.stamp('stats ok')
    for q in range(4):
        a.e(f"ds_read_b64 {vr(56+2*q,2)}, v76 offset:{32*q}")
    a.e("s_waitcnt lgkmcnt(0)")
    for q in range(4):
        S2 = 56 + 2*q
        a.e(f"v_mul_f32 v{S2}, s42, v{S2}")
    for q in range(4):
        S2 = 56 + 2*q
        a.e(f"v_mul_f32 v{64+q}, v{S2}, v{S2}")
    for q in range(4):
        S2 = 56 + 2*q
        a.e(f"v_fma_f32 v{S2+1}, v{S2+1}, s42, -v{64+q}")
    for q in range(4):
        S2 = 56 + 2*q
        a.e(f"v_max_f32 v{S2+1}, 0, v{S2+1}")
    for q in range(4):
        S2 = 56 + 2*q
        a.e(f"v_add_f32 v{S2+1}, {hexf(1e-5)}, v{S2+1}")
    for q in range(4):
        S2 = 56 + 2*q
        a.e(f"v_rsq_f32 v{S2+1}, v{S2+1}")
    a.e("s_nop 0")
    for q in range(4):
        S2 = 56 + 2*q
        a.e(f"v_mul_f32 v{S2}, v{S2}, v{S2+1}")
    for q in range(4):
        S2 = 56 + 2*q
        a.e(f"v_sub_f32 v{S2}, 0, v{S2}")
    F0 = 16
    for q in range(4):
        xq = X + q*20; S2 = 56 + 2*q
        for i in range(20):
            a.e(f"v_lshlrev_b32 v{F0+2*i}, 16, v{xq+i}\nv_and_b32 v{F0+2*i+1}, 0xffff0000, v{xq+i}")
        for i in range(40):
            a.e(f"v_fma_f32 v{F0+i}, v{F0+i}, v{S2+1}, v{S2}")
        for i in range(20):
            a.e(f"v_cvt_pk_bf16_f32 v{xq+i}, v{F0+2*i}, v{F0+2*i+1}")
    ST.stamp('LN regs')
    wait_cnt(a, V_CNT, V_T, C_XR, 8)
    wait_cnt(a, V_CNT, V_T, C_P, 4)
    ST.stamp('C_P ok')
    wr = []
    for q in range(4):
        xq = X + q * 20
        for p in range(4):
            wr.append(f"ds_write_b128 v72, {vr(xq+4*p,4)} offset:{XH + q*4608 + p*256}")
        wr.append(f"s_mov_b64 exec, s[40:41]\nds_write_b128 v72, {vr(xq+16,4)} offset:{XH + q*4608 + 1024}\ns_mov_b64 exec, -1")
    dm = []
    for b in range(2):
        for ph in range(2): dm += dma_regular(b, ph, V_OM, V_OX)
    for x in dm[:9]: a.e(x)
    for x in wr: a.e(x)
    arrive(a, V_CNT, V_ONE, C_Y)
    SLAB1 = dm[9:]
    ST.stamp('LN done')

    def init_acc(bi):
        for t in range(4):
            a.e(f"v_mov_b32 v{SETA[0]+4*t}, v{bi+t}")
            for i in range(1, 4): a.e(f"v_mov_b32 v{SETA[0]+4*t+i}, 0")
        a.e(f"v_mov_b32 v{AX}, v{bi+4}")
        for i in range(1, 4): a.e(f"v_mov_b32 v{AX+i}, 0")
        a.e(f"""
        v_mov_b32 v{V_T}, 0x3f80
        v_cmp_gt_u32 vcc, 32, v{L}
        v_mov_b32 v{SETB[0]+1}, 0
        v_mov_b32 v{SETB[0]+2}, 0
        v_cndmask_b32 v{SETB[0]}, 0, v{V_T}, vcc
        v_mov_b32 v{SETB[0]+3}, 0
        v_cmp_gt_u32 vcc, 16, v{L}
        v_mov_b32 v{BX+1}, 0
        v_mov_b32 v{BX+2}, 0
        v_cndmask_b32 v{BX}, 0, v{V_T}, vcc
        v_mov_b32 v{BX+3}, 0
        s_nop 1
        """)
        for t in range(4):
            for rt in range(2):
                a.e(f"v_mfma_f32_32x32x16_bf16 {vr(acc(t,rt),16)}, {vr(SETA[0]+4*t,4)}, {vr(SETB[0],4)}, 0")
        for rt in range(2):
            for rh in range(2):
                a.e(f"v_mfma_f32_16x16x32_bf16 {vr(accx(rt,rh),4)}, {vr(AX,4)}, {vr(BX,4)}, 0")

    def setup_b_x():
        a.e(f"""
        v_and_b32 v16, 31, v{L}
        v_mul_u32_u24 v17, 1152, v16
        v_bfe_u32 v18, v16, 1, 3
        v_lshrrev_b32 v19, 5, v{L}
        """)
        for b in range(4):
            a.e(f"v_add_u32 v20, {2*b}, v19\nv_xor_b32 v20, v20, v18\nv_lshl_add_u32 v{V_B+b}, v20, 4, v17")
        a.e(f"""
        v_and_b32 v16, 15, v{L}
        v_mul_u32_u24 v17, 1152, v16
        v_bfe_u32 v18, v16, 1, 3
        v_lshrrev_b32 v19, 4, v{L}
        """)
        for e in range(2):
            a.e(f"v_add_u32 v20, {4*e}, v19\nv_xor_b32 v20, v20, v18\nv_lshl_add_u32 v{V_BX+e}, v20, 4, v17")
    def setup_b_h(base):
        a.e(f"""
        v_lshlrev_b32 v{V_B}, 4, v{L}
        v_add_u32 v{V_B}, {base}, v{V_B}
        v_lshrrev_b32 v16, 5, v{L}
        v_mul_u32_u24 v16, {KS}, v16
        v_bfe_u32 v17, v{L}, 4, 1
        v_lshl_add_u32 v16, v17, 9, v16
        v_and_b32 v17, 15, v{L}
        v_lshl_add_u32 v16, v17, 4, v16
        v_add_u32 v{V_BX}, {base}, v16
        """)
    setup_b_x()
    a.e("s_waitcnt vmcnt(9)")
    init_acc(V_BI)
    wait_cnt(a, V_CNT, V_T, C_Y, 4)
    a.e("s_waitcnt vmcnt(0)")
    ST.stamp('G1 start')

    def run_gemm(G, vom, vox, tag, next_dma0, next_dma1, switch, hook=None, pre=()):
        for s in G.reads_main(0, 0, 0, 0): a.e(s)
        for s in pre: a.e(s)
        a.e(f"s_mov_b32 s{S_IT}, {5 if NO_MLP else 8}")
        if NO_MLP: a.e(f"s_branch {tag}_SKIP")
        a.raw(".p2align 6")
        a.label(f"{tag}_LOOP")
        for d in range(2):
            G.dstep(d, 2*d, dma_regular(d, 0, vom, vox), dma_regular(d, 1, vom, vox), 9, 9)
        if hook: hook()
        if asmlib.STAMPS and os.environ.get('ITSTAMP'):
            for itv in (7, 5, 3, 1):
                LS = a.newlabel("ITS")
                a.e(f"s_cmp_lg_u32 s{S_IT}, {itv}\ns_cbranch_scc1 {LS}")
                ST.stamp(f"{tag} it{8-itv}")
                a.label(LS)
        G.advance()
        a.e(f"""
        s_sub_u32 s{S_IT}, s{S_IT}, 1
        s_cmp_lg_u32 s{S_IT}, 0
        s_cbranch_scc1 {tag}_LOOP
        """)
        if NO_MLP:
            a.label(f"{tag}_SKIP")
            if hook: hook()
        switch()
        G.dstep(0, 0, next_dma0(0), next_dma1(0), 9, 9)
        G.dstep(1, 2, next_dma0(1), next_dma1(1), 9, 9, next_reads=False)

    G1 = GemmGen(a, 'x')
    def sw1():
        a.e(f"""
        s_mov_b32 s4, s12
        s_mov_b32 s5, s13
        s_mov_b32 s6, s14
        s_mov_b32 s7, s15
        s_mov_b32 s{S_OFF}, 0
        s_mov_b32 s{S_STEP}, {4*1152}
        """)
    run_gemm(G1, V_OM, V_OX, "G1", lambda b: dma_regular(b, 0, V_OM2, V_OX2), lambda b: dma_regular(b, 1, V_OM2, V_OX2), sw1, pre=SLAB1)
    arrive(a, V_CNT, V_ONE, C_G1)
    ST.stamp('G1 end')
    a.e(f"""
    s_mov_b32 s44, {hexf(GC1)}
    s_mov_b32 s45, {hexf(GC1)}
    v_mov_b32 v30, {hexf(GC2)}
    v_mov_b32 v31, {hexf(GC2)}
    v_and_b32 v16, 31, v{L}
    v_lshlrev_b32 v16, 2, v16
    v_add_u32 v16, {GBUF}, v16
    v_and_b32 v17, 15, v{L}
    v_lshlrev_b32 v17, 2, v17
    v_add_u32 v17, {GBUF}, v17
    ds_read_b32 v{V_G}, v16
    ds_read_b32 v{V_G+1}, v16 offset:128
    ds_read_b32 v{V_G+2}, v17
    ds_read_b32 v{V_G+3}, v17 offset:64
    ds_read_b32 v{V_G+4}, v17 offset:128
    ds_read_b32 v{V_G+5}, v17 offset:192
    s_nop 7
    """)
    def gelu_group(base, npairs, dst):
        for p0 in range(0, npairs, 2):
            ps = [p0, p0+1]
            for n, p in enumerate(ps):
                a.e(f"v_pk_mul_f32 {vr(16+4*n,2)}, {vr(base+2*p,2)}, {vr(base+2*p,2)}")
            for n, p in enumerate(ps):
                a.e(f"v_pk_fma_f32 {vr(16+4*n,2)}, {vr(16+4*n,2)}, s[44:45], v[30:31]")
            for n, p in enumerate(ps):
                a.e(f"v_pk_mul_f32 {vr(16+4*n,2)}, {vr(16+4*n,2)}, {vr(base+2*p,2)}")
            for n, p in enumerate(ps):
                a.e(f"v_exp_f32 v{16+4*n}, v{16+4*n}\nv_exp_f32 v{17+4*n}, v{17+4*n}")
            for n, p in enumerate(ps):
                a.e(f"v_pk_add_f32 {vr(16+4*n,2)}, {vr(16+4*n,2)}, 1.0 op_sel_hi:[1,0]")
            for n, p in enumerate(ps):
                a.e(f"v_rcp_f32 v{16+4*n}, v{16+4*n}\nv_rcp_f32 v{17+4*n}, v{17+4*n}")
            for n, p in enumerate(ps):
                a.e(f"v_pk_mul_f32 {vr(16+4*n,2)}, {vr(16+4*n,2)}, {vr(base+2*p,2)}")
            for n, p in enumerate(ps):
                a.e(f"v_cvt_pk_bf16_f32 v{dst+p}, v{16+4*n}, v{17+4*n}")
    a.e(f"""
    v_lshlrev_b32 v24, 4, v{L}
    s_mul_i32 s{S_T0}, s{S_W}, {8*KS}
    v_add_u32 v24, s{S_T0}, v24                  ; vH
    v_bfe_u32 v25, v{L}, 4, 1
    v_lshlrev_b32 v25, 9, v25
    v_and_b32 v26, 15, v{L}
    v_lshl_add_u32 v25, v26, 4, v25
    v_lshrrev_b32 v26, 5, v{L}
    v_lshl_add_u32 v25, v26, 3, v25
    s_add_u32 s{S_T0}, s{S_W}, 32
    s_mul_i32 s{S_T0}, s{S_T0}, {KS}
    v_add_u32 v25, s{S_T0}, v25                  ; vHx
    """)
    first = True
    for t in range(4):
        for rt in range(2):
            gelu_group(acc(t, rt), 8, acc(t, rt))
            if first:
                wait_cnt(a, V_CNT, 26, C_G1, 4)
                first = False
            for h in range(2):
                a.e(f"ds_write_b128 v24, {vr(acc(t,rt)+4*h,4)} offset:{XH + (2*t+h)*KS + rt*1024}")
    for rt in range(2):
        for rh in range(2):
            gelu_group(accx(rt, rh), 2, accx(rt, rh))
            a.e(f"ds_write_b64 v25, {vr(accx(rt,rh),2)} offset:{XH + rt*1024 + rh*256}")
    arrive(a, V_CNT, V_ONE, C_H)
    ST.stamp('GELU done')
    for i in range(6):
        a.e(f"v_sub_f32 v{V_G+i}, 1.0, v{V_G+i}")
    init_acc(V_BI + 5)
    setup_a(a, True)
    setup_b_h(XH)
    wait_cnt(a, V_CNT, V_T, C_H, 4)
    ST.stamp('G2 start')
    G2 = GemmGen(a, 'h')
    def hook2():
        L1 = a.newlabel("G2H")
        a.e(f"s_cmp_lg_u32 s{S_IT}, 5\ns_cbranch_scc1 {L1}")
        arrive(a, V_CNT, V_ONE, C_G2, wait=False)
        a.label(L1)
    run_gemm(G2, V_OM2, V_OX2, "G2", lambda b: dma_wo(b, b, 0), lambda b: dma_wo(b, b, 1), lambda: None, hook=hook2)
    ST.stamp('G2 end')
    a.e("s_nop 15")
    for t in range(4):
        for rt in range(2):
            for i in range(0, 16, 2):
                a.e(f"v_pk_mul_f32 {vr(acc(t,rt)+i,2)}, {vr(acc(t,rt)+i,2)}, {vr(V_G,2)} op_sel:[0,{rt}] op_sel_hi:[1,{rt}]")
    for rt in range(2):
        for rh in range(2):
            for i in range(0, 4, 2):
                a.e(f"v_pk_mul_f32 {vr(accx(rt,rh)+i,2)}, {vr(accx(rt,rh)+i,2)}, {vr(V_G+2+2*rt,2)} op_sel:[0,{rh}] op_sel_hi:[1,{rh}]")
    setup_b_h(OPB)
    wait_cnt(a, V_CNT, V_T, C_O, 4)
    ST.stamp('O ready')
    a.e(f"ds_read_b32 v{V_T}, v{V_CNT} offset:{C_TAG}")
    for s in G2.reads_main(0, 0, 0, 0): a.e(s)
    a.e(f"s_waitcnt lgkmcnt(0)\nv_readfirstlane_b32 s47, v{V_T}")
    G2.dstep(0, 0, dma_wo(2, 0, 0), dma_wo(2, 0, 1), 9, 9)
    G2.dstep(1, 2, [], [], 9, 5)
    G2.dstep(0, 4, [], [], 0, None, next_reads=False)
    ST.stamp('wo done')
    a.e(f"""
    s_mul_i32 s{S_T0}, s3, 72
    s_mul_i32 s{S_T1}, s{S_W}, 18
    s_add_u32 s{S_T0}, s{S_T0}, s{S_T1}
    s_lshl_b32 s{S_T0}, s{S_T0}, 10
    s_add_u32 s{S_T0}, s{S_T0}, {WS_PART}
    v_lshlrev_b32 v{V_T}, 4, v{L}
    s_nop 7
    """)
    for pr in range(18):
        src = ACC + 8*pr; dst = 16 + 4*(pr % 8)
        for d in range(4):
            a.e(f"v_cvt_pk_bf16_f32 v{dst+d}, v{src+2*d}, v{src+2*d+1}")
        if pr and pr % 4 == 0: a.e(f"s_add_u32 s{S_T0}, s{S_T0}, 4096")
        if pr >= 8: a.e("s_nop 0")
        a.e(f"buffer_store_dwordx4 {vr(dst,4)}, v{V_T}, s[20:23], s{S_T0} offen offset:{(pr%4)*1024} sc1")
    a.e("s_waitcnt vmcnt(0)")
    a.e(f"""
    s_mov_b64 exec, 1
    ds_add_rtn_u32 v16, v{V_CNT}, v{V_ONE} offset:{C_S}
    s_waitcnt lgkmcnt(0)
    v_readfirstlane_b32 s{S_T0}, v16
    s_cmp_lg_u32 s{S_T0}, 3
    s_cbranch_scc1 M_NOFLAG
    s_lshl_b32 s{S_T0}, s{S_RB}, 7
    s_lshl_b32 s{S_T1}, s{S_J}, 2
    s_add_u32 s{S_T0}, s{S_T0}, s{S_T1}
    s_add_u32 s{S_T0}, s{S_T0}, {WS_XF}
    v_mov_b32 v16, s47
    v_mov_b32 v17, 0
    buffer_store_dword v16, v17, s[20:23], s{S_T0} offen sc1
    """)
    a.label("M_NOFLAG")
    a.e("s_mov_b64 exec, -1")
    ST.stamp('published')
    gen_reduce(a, ST, S_W)

KVB = [16, 32, 48, 64]
QA = lambda h: 80 + 6*h
QB = lambda h: 84 + 6*h
P = 104
S = [112, 128]
O = lambda h: 144 + 16*h
AV_16, AV_4, A_CNT, A_ONE, A_G = 2, 3, 11, 12, 212
NRM = 208
S_RT, S_KH, S_KV, S_LP, S_PASS = 31, 32, 33, 34, 46
XQ = OPB
KVD = 3

def gen_att(a, ST):
    L = V_LANE
    PA = 208
    a.e(f"""
    v_lshlrev_b32 v{AV_16}, 4, v{L}
    v_lshlrev_b32 v{AV_4}, 2, v{L}
    v_mov_b32 v{A_CNT}, {CNT}
    v_mov_b32 v{A_ONE}, 1
    v_lshrrev_b32 v15, 5, v{L}
    v_cmp_eq_u32 s[40:41], 0, v15
    s_mov_b32 s44, {hexf(CSCALE)}
    s_mov_b32 s45, {hexf(CSCALE)}
    """)
    mk_srd(a, 20, 62, 63, 0x10000000)
    for i in range(0, 12, 2):
        a.e(f"v_pk_mul_f32 {vr(PA+i,2)}, {vr(PA+i,2)}, s[44:45]")
        a.e(f"v_pk_mul_f32 {vr(PA+16+i,2)}, {vr(PA+16+i,2)}, s[44:45]")
    for d in range(4):
        a.e(f"v_cvt_pk_bf16_f32 v{QA(0)+d}, v{PA+2*d}, v{PA+2*d+1}")
    a.e(f"v_cvt_pk_bf16_f32 v{QB(0)}, v{PA+8}, v{PA+9}")
    W = 16
    for d in range(6):
        a.e(f"v_cvt_pk_bf16_f32 v{W+d}, v{PA+16+2*d}, v{PA+16+2*d+1}")
    a.e(f"""
    v_mov_b32 v{QA(1)}, v{W+1}
    v_mov_b32 v{QA(1)+2}, v{W+3}
    v_mov_b32 v{QB(1)}, v{W+5}
    v_mov_b32 v24, v{W+2}
    s_nop 0
    v_permlane32_swap_b32 v{W}, v{W+2}
    s_nop 1
    v_cndmask_b32 v{QA(1)+1}, v{W}, v{W+2}, s[40:41]
    v_permlane32_swap_b32 v24, v{W+4}
    s_nop 1
    v_cndmask_b32 v{QA(1)+3}, v24, v{W+4}, s[40:41]
    v_cndmask_b32 v{QB(0)}, 0, v{QB(0)}, s[40:41]
    v_cndmask_b32 v{QB(1)}, 0, v{QB(1)}, s[40:41]
    s_mul_i32 s{S_T0}, s{S_W}, 2560
    s_add_u32 s{S_T0}, s{S_T0}, {XQ}
    v_add_u32 v5, s{S_T0}, v{AV_16}
    v_add_u32 v6, s{S_T0}, v{AV_4}
    ds_write_b128 v5, {vr(QA(0),4)}
    ds_write_b32 v6, v{QB(0)} offset:1024
    ds_write_b128 v5, {vr(QA(1),4)} offset:1280
    ds_write_b32 v6, v{QB(1)} offset:2304
    s_xor_b32 s{S_T1}, s{S_W}, 2
    s_mul_i32 s{S_T1}, s{S_T1}, 2560
    s_add_u32 s{S_T1}, s{S_T1}, {XQ}
    v_add_u32 v5, s{S_T1}, v{AV_16}
    v_add_u32 v6, s{S_T1}, v{AV_4}
    """)
    arrive(a, A_CNT, A_ONE, C_ST)
    for h in range(2):
        norm_sum(a, NRM+h, [QA(h), QA(h)+1, QA(h)+2, QA(h)+3, QB(h)], 4)
    wait_cnt(a, A_CNT, 13, C_ST, 4)
    a.e(f"""
    ds_read_b128 {vr(QA(2),4)}, v5
    ds_read_b32 v{QB(2)}, v6 offset:1024
    ds_read_b128 {vr(QA(3),4)}, v5 offset:1280
    ds_read_b32 v{QB(3)}, v6 offset:2304
    v_mov_b32 v14, 0x00003f80
    """)
    for b in range(4):
        a.e(f"v_cndmask_b32 v{KVB[b]+13}, 0, v14, s[40:41]")
    a.e("s_waitcnt lgkmcnt(0)")
    for h in range(2, 4):
        norm_sum(a, NRM+h, [QA(h), QA(h)+1, QA(h)+2, QA(h)+3, QB(h)], 4)
    for h in range(4):
        a.e(f"v_sqrt_f32 v{NRM+h}, v{NRM+h}")
    ST.stamp('Q ready')
    a.e(f"s_cmp_lg_u32 s{S_W}, 3\ns_cbranch_scc1 A_KVW\ns_mov_b32 s39, 0x100000")
    a.label("A_KVP")
    a.e(f"""
    global_load_dword v13, v{AV_4}, s[60:61] sc1
    s_waitcnt vmcnt(0)
    v_cmp_eq_u32 vcc, 0, v13
    s_nop 1
    s_cmp_eq_u64 vcc, 0
    s_cbranch_scc1 A_KVD
    s_sleep 2
    s_sub_u32 s39, s39, 1
    s_cmp_lg_u32 s39, 0
    s_cbranch_scc1 A_KVP
    """)
    a.label("A_KVD")
    a.e(f"""
    s_mov_b64 exec, 1
    ds_write_b32 v{A_CNT}, v13 offset:{C_TAG}
    ds_add_u32 v{A_CNT}, v{A_ONE} offset:{C_KV}
    s_mov_b64 exec, -1
    """)
    a.label("A_KVW")
    wait_cnt(a, A_CNT, 13, C_KV, 1)
    ST.stamp('KV ok')
    a.e(f"""
    ds_read_b32 v4, v{A_CNT} offset:{C_TAG}
    s_mov_b32 s{S_T1}, {WS_KMAX}
    buffer_load_dword v13, v{AV_4}, s[20:23], s{S_T1} offen sc1
    s_lshl_b32 s{S_KV}, s{S_KH}, 17
    s_add_u32 s{S_KV}, s{S_KV}, {WS_KV}
    """)
    def kv_load(buf):
        b = KVB[buf]
        a.e(f"""
        buffer_load_dwordx4 {vr(b,4)}, v{AV_16}, s[20:23], s{S_KV} offen sc1
        buffer_load_dword v{b+12}, v{AV_4}, s[20:23], s{S_KV} offen offset:3072 sc1
        buffer_load_dwordx4 {vr(b+4,4)}, v{AV_16}, s[20:23], s{S_KV} offen offset:1024 sc1
        buffer_load_dwordx4 {vr(b+8,4)}, v{AV_16}, s[20:23], s{S_KV} offen offset:2048 sc1
        s_add_u32 s{S_KV}, s{S_KV}, 4096
        """)
    for b in range(KVD): kv_load(b)
    a.e(f"""
    v_and_b32 v8, 31, v{L}
    v_lshlrev_b32 v8, 2, v8
    s_lshl_b32 s{S_T0}, s{S_RT}, 7
    s_add_u32 s{S_T0}, s{S_T0}, {GBUF}
    v_add_u32 v{A_G+1}, s{S_T0}, v8
    s_waitcnt vmcnt({4*KVD}) lgkmcnt(0)
    v_readfirstlane_b32 s47, v4
    """)
    for pat in ["quad_perm:[1,0,3,2]", "quad_perm:[2,3,0,1]", "row_ror:4", "row_ror:8"]:
        a.e(f"v_max_f32_dpp v13, v13, v13 {pat} row_mask:0xf bank_mask:0xf\ns_nop 1")
    a.e(f"""
    ds_swizzle_b32 v14, v13 offset:{(16<<10)|0x1f}
    s_waitcnt lgkmcnt(0)
    v_max_f32 v13, v13, v14
    v_mov_b32 v14, v13
    s_nop 1
    v_permlane32_swap_b32 v13, v14
    s_nop 1
    v_max_f32 v13, v13, v14
    v_sqrt_f32 v13, v13
    s_nop 0
    v_mul_f32 v13, {hexf(1.0 + 2.0**-6)}, v13
    """)
    if FORCE_FB:
        a.e(f"v_add_f32 v13, 0x43000000, v13")
    def set_m(h, vm):
        a.e(f"""
        v_and_b32 v4, 0xffff0000, v{vm}
        v_sub_f32 v5, v{vm}, v4
        v_and_b32 v6, 0xffff0000, v5
        v_sub_f32 v5, v5, v6
        v_lshrrev_b32 v5, 16, v5
        v_lshrrev_b32 v4, 16, v4
        v_or_b32 v4, v4, v6
        v_cndmask_b32 v{QB(h)}, v4, v{QB(h)}, s[40:41]
        v_cndmask_b32 v{QB(h)+1}, 0, v5, s[40:41]
        """)
    for h in range(4):
        a.e(f"v_mul_f32 v7, v{NRM+h}, v13\nv_sub_f32 v7, 0, v7")
        set_m(h, 7)
    a.e(f"s_mov_b32 s{S_PASS}, 4")
    if PF:
        a.e(f"""
        s_load_dwordx2 s[56:57], s[0:1], 64      ; w2
        s_load_dwordx2 s[58:59], s[0:1], 32      ; wo
        s_load_dwordx2 s[42:43], s[0:1], 48      ; w1
        s_waitcnt lgkmcnt(0)
        s_mul_i32 s{S_T0}, s{S_J}, 1152
        s_add_u32 s42, s42, s{S_T0}
        s_addc_u32 s43, s43, 0
        s_sub_u32 s{S_T1}, {576*9216}, s{S_T0}
        s_mul_i32 s{S_T0}, s{S_J}, {576*1152}
        s_add_u32 s56, s56, s{S_T0}
        s_addc_u32 s57, s57, 0
        s_mul_i32 s{S_T0}, s{S_J}, {72*1152}
        s_add_u32 s58, s58, s{S_T0}
        s_addc_u32 s59, s59, 0
        """)
        mk_srd(a, 24, 42, 43, f"s{S_T1}")
        mk_srd(a, 48, 56, 57, 576*1152)
        mk_srd(a, 52, 58, 59, 72*1152)
        a.e(f"""
        s_and_b32 s{S_T0}, s{S_RB}, {NSH-1}
        s_lshl_b32 s{S_T0}, s{S_T0}, 6
        s_mul_i32 s{S_T1}, s{S_W}, {64*NSH}
        s_add_u32 s{S_T0}, s{S_T0}, s{S_T1}
        s_mov_b32 s{S_T2}, {(2**32 + 8)//9}
        """)
        for k in range(1):
            a.e(f"""
            s_add_u32 s{S_T1}, s{S_T0}, {2*64*NSH}
            v_add_u32 v4, s{S_T1}, v{L}
            v_min_u32 v4, 5183, v4
            v_mul_hi_u32 v5, v4, s{S_T2}
            v_mul_u32_u24 v6, 9, v5
            v_sub_u32 v4, v4, v6
            v_mul_u32_u24 v5, 9216, v5
            v_lshl_add_u32 v{221+k}, v4, 7, v5
            """)
        a.e(f"""
        s_and_b32 s{S_T0}, s{S_RB}, {NSH-1}
        s_lshl_b32 s{S_T0}, s{S_T0}, 6
        v_add_u32 v215, s{S_T0}, v{L}
        v_lshlrev_b32 v215, 7, v215
        s_mul_i32 s{S_T1}, s{S_W}, {64*NSH*128}
        v_add_u32 v214, s{S_T1}, v215
        """)

    def qk_a(n_s, h, buf, c="0"):
        return f"v_mfma_f32_32x32x16_bf16 {vr(S[n_s],16)}, {vr(KVB[buf],4)}, {vr(QA(h),4)}, 0"
    def qk_b(n_s, h, buf):
        return f"v_mfma_f32_32x32x8_bf16 {vr(S[n_s],16)}, {vr(KVB[buf]+12,2)}, {vr(QB(h),2)}, {vr(S[n_s],16)}"
    def pv(h, t, buf):
        return f"v_mfma_f32_32x32x16_bf16 {vr(O(h),16)}, {vr(KVB[buf]+4+4*t,4)}, {vr(P+4*t,4)}, {vr(O(h),16)}"
    def ec(s, g):
        b = S[s] + 4*g
        for i in range(4): a.e(f"v_exp_f32 v{b+i}, v{b+i}")
        a.e(f"v_cvt_pk_bf16_f32 v{P+2*g}, v{b}, v{b+1}")
        a.e(f"v_cvt_pk_bf16_f32 v{P+2*g+1}, v{b+2}, v{b+3}")

    a.label("A_MAIN")
    for i in range(8): a.e(f"v_mov_b32 v{P+i}, 0")
    for i in range(4): a.e(f"v_mov_b32 v{KVB[3]+8+i}, 0")
    a.e("s_nop 1")
    for h in range(4):
        a.e(f"v_mfma_f32_32x32x16_bf16 {vr(O(h),16)}, {vr(P,4)}, {vr(P,4)}, 0")
    a.e(f"s_waitcnt vmcnt({4*(KVD-1)})")
    ST.stamp('loop start')
    a.e(f"s_setprio {PPAT[3] if len(set(PPAT)) > 1 else PPAT[0]}")
    a.e(qk_a(0, 0, 0)); a.e(qk_b(0, 0, 0))
    a.e(f"s_mov_b32 s{S_LP}, {1 if NO_ATT else 8}")
    a.e("s_nop 15")
    a.raw(".p2align 6")
    a.label("ATT_LOOP")
    for kb in range(4):
        for h in range(4):
            n = kb*4 + h
            cur, nxt = n % 2, (n + 1) % 2
            nh, nbuf = (h + 1) % 4, (kb if h < 3 else (kb + 1) % 4)
            ph, pbuf = (h - 1) % 4, (kb if h > 0 else (kb - 1) % 4)
            if h == 0 and len(set(PPAT)) > 1 and PPAT[kb] != PPAT[kb-1]: a.e(f"s_setprio {PPAT[kb]}")
            if h == 3: a.e(f"s_waitcnt vmcnt({4*(KVD-1)})")
            a.e(qk_a(nxt, nh, nbuf))
            ec(cur, 0)
            a.e(pv(ph, 1, pbuf))
            if h == 0: kv_load((kb + KVD) % 4)
            if PF and h == 1:
                LP = a.newlabel("PFX"); LQ = a.newlabel("PFY"); LR = a.newlabel("PFZ")
                a.e(f"""
                s_cmp_lg_u32 s{S_W}, {kb}
                s_cbranch_scc1 {LP}
                s_cmp_lt_u32 s{S_LP}, 6
                s_cbranch_scc1 {LP}
                s_cmp_eq_u32 s{S_LP}, 8
                s_cbranch_scc0 {LQ}
                buffer_load_dword v216, v221, s[24:27], 0 offen
                s_branch {LP}
                """)
                a.label(LQ)
                if kb == 2:
                    a.e(f"""
                    s_cmp_eq_u32 s{S_LP}, 6
                    s_cbranch_scc0 {LR}
                    buffer_load_dword v216, v215, s[52:55], 0 offen
                    s_branch {LP}
                    """)
                    a.label(LR)
                a.e(f"""
                buffer_load_dword v216, v214, s[48:51], 0 offen
                v_add_u32 v214, {4*64*NSH*128}, v214
                """)
                a.label(LP)
            ec(cur, 1)
            a.e(qk_b(nxt, nh, nbuf))
            ec(cur, 2)
            a.e(pv(h, 0, kb))
            ec(cur, 3)
    a.e(f"""
    s_sub_u32 s{S_LP}, s{S_LP}, 1
    s_cmp_lg_u32 s{S_LP}, 0
    s_cbranch_scc1 ATT_LOOP
    """)
    a.e("s_nop 1")
    a.e(pv(3, 1, 3))
    a.e(f"ds_read_b32 v{A_G}, v{A_G+1}")
    a.e("s_waitcnt vmcnt(0)\ns_nop 15")
    a.e("s_setprio 0")
    ST.stamp('loop end')
    a.e(f"""
    v_min_f32 v4, v{O(0)+10}, v{O(1)+10}
    v_min_f32 v5, v{O(2)+10}, v{O(3)+10}
    v_min_f32 v4, v4, v5
    v_mov_b32 v5, {hexf(2.0**-90)}
    v_cmp_nge_f32 vcc, v4, v5
    s_nop 1
    s_and_b64 vcc, vcc, s[40:41]
    s_cmp_eq_u64 vcc, 0
    s_cbranch_scc1 A_CHKOK
    """)
    arrive(a, A_CNT, A_ONE, C_FB, wait=False)
    a.label("A_CHKOK")
    wait_cnt(a, A_CNT, 13, C_G2, 4)
    ST.stamp('G2 ok')
    a.e(f"""
    s_mul_i32 s{S_T0}, s{S_W}, 6144
    v_add_u32 v13, s{S_T0}, v{AV_16}
    s_xor_b32 s{S_T1}, s{S_W}, 2
    s_mul_i32 s{S_T1}, s{S_T1}, 6144
    v_add_u32 v14, s{S_T1}, v{AV_16}
    """)
    for n, h in enumerate([2, 3]):
        for qd in range(3):
            a.e(f"ds_write_b128 v13, {vr(O(h)+4*qd,4)} offset:{XH + n*3072 + qd*1024}")
    arrive(a, A_CNT, A_ONE, C_X)
    wait_cnt(a, A_CNT, 15, C_X, f"s{S_PASS}")
    a.e(f"""
    s_cmp_lg_u32 s{S_PASS}, 4
    s_cbranch_scc1 A_NOFB
    ds_read_b32 v15, v{A_CNT} offset:{C_FB}
    s_waitcnt lgkmcnt(0)
    v_readfirstlane_b32 s{S_T0}, v15
    s_cmp_eq_u32 s{S_T0}, 0
    s_cbranch_scc1 A_NOFB
    """)
    for h in range(4):
        a.e(f"v_mov_b32 v{NRM+h}, 0xff800000")
        a.e(f"v_cndmask_b32 v{QB(h)}, 0, v{QB(h)}, s[40:41]\nv_mov_b32 v{QB(h)+1}, 0")
    a.e(f"""
    s_lshl_b32 s{S_KV}, s{S_KH}, 17
    s_add_u32 s{S_KV}, s{S_KV}, {WS_KV}
    s_mov_b32 s{S_LP}, 32
    """)
    a.label("A_MAXL")
    kv_load(0)
    a.e("s_waitcnt vmcnt(0)")
    for h in range(4):
        a.e(qk_a(0, h, 0)); a.e(qk_b(0, h, 0))
        a.e("s_nop 15\ns_nop 7")
        for i in range(0, 16, 2):
            a.e(f"v_max3_f32 v{NRM+h}, v{S[0]+i}, v{S[0]+i+1}, v{NRM+h}")
    a.e(f"""
    s_sub_u32 s{S_LP}, s{S_LP}, 1
    s_cmp_lg_u32 s{S_LP}, 0
    s_cbranch_scc1 A_MAXL
    """)
    for h in range(4):
        a.e(f"""
        v_mov_b32 v4, v{NRM+h}
        s_nop 1
        v_permlane32_swap_b32 v{NRM+h}, v4
        s_nop 1
        v_max_f32 v{NRM+h}, v{NRM+h}, v4
        """)
    a.e(f"""
    s_mul_i32 s{S_T0}, s{S_W}, 6144
    v_add_u32 v13, s{S_T0}, v{AV_4}
    s_xor_b32 s{S_T1}, s{S_W}, 2
    s_mul_i32 s{S_T1}, s{S_T1}, 6144
    v_add_u32 v14, s{S_T1}, v{AV_4}
    """)
    for h in range(4):
        a.e(f"ds_write_b32 v13, v{NRM+h} offset:{XH + 256*h}")
    arrive(a, A_CNT, A_ONE, C_M)
    wait_cnt(a, A_CNT, 15, C_M, 4)
    for h in range(4):
        a.e(f"ds_read_b32 v{4+h if False else 96+0+0 if False else 217+h}, v14 offset:{XH + 256*((h+2)%4)}")
    a.e("s_waitcnt lgkmcnt(0)")
    for h in range(4):
        a.e(f"v_max_f32 v7, v{NRM+h}, v{217+h}\nv_sub_f32 v7, 0, v7")
        set_m(h, 7)
    arrive(a, A_CNT, A_ONE, C_M)
    wait_cnt(a, A_CNT, 15, C_M, 8)
    a.e(f"""
    s_lshl_b32 s{S_KV}, s{S_KH}, 17
    s_add_u32 s{S_KV}, s{S_KV}, {WS_KV}
    s_mov_b32 s{S_PASS}, 8
    """)
    for b in range(KVD): kv_load(b)
    a.e("s_branch A_MAIN")
    a.label("A_NOFB")
    a.e(f"""
    s_xor_b32 s{S_T1}, s{S_W}, 2
    s_mul_i32 s{S_T1}, s{S_T1}, 6144
    v_add_u32 v14, s{S_T1}, v{AV_16}
    """)
    for n in range(2):
        for qd in range(3):
            a.e(f"ds_read_b128 {vr(S[0]+ (n*12) + 4*qd,4)}, v14 offset:{XH + n*3072 + qd*1024}")
    a.e("s_waitcnt lgkmcnt(0)")
    for n in range(2):
        for i in range(12):
            a.e(f"v_add_f32 v{16+12*n+i}, v{O(n)+i}, v{S[0]+12*n+i}")
    a.e(f"""
    s_lshl_b32 s{S_T0}, s{S_RT}, 10
    s_add_u32 s{S_T0}, s{S_T0}, {OPB}
    v_add_u32 v13, s{S_T0}, v{AV_16}
    s_mul_i32 s{S_T1}, s{S_KH}, {3*KS}
    v_add_u32 v13, s{S_T1}, v13
    """)
    for n in range(2):
        b = 16 + 12*n
        a.e(f"""
        v_mov_b32 v4, v{b+10}
        v_mov_b32 v5, v{b+10}
        s_nop 1
        v_permlane32_swap_b32 v4, v5
        s_nop 1
        v_rcp_f32 v5, v4
        s_nop 0
        v_mul_f32 v5, v5, v{A_G}
        """)
        for i in range(10):
            a.e(f"v_mul_f32 v{b+i}, v5, v{b+i}")
        a.e(f"""
        v_cvt_pk_bf16_f32 v40, v{b}, v{b+1}
        v_cvt_pk_bf16_f32 v41, v{b+2}, v{b+3}
        v_cvt_pk_bf16_f32 v42, v{b+4}, v{b+5}
        v_cvt_pk_bf16_f32 v43, v{b+6}, v{b+7}
        v_cvt_pk_bf16_f32 v44, v{b+8}, v{b+9}
        v_mov_b32 v45, 0
        v_cndmask_b32 v44, 0, v44, s[40:41]
        """)
        for g in range(3):
            x = 3*n + g
            a.e(f"ds_write_b64 v13, {vr(40+2*g,2)} offset:{(x>>1)*KS + 8*(x&1)}")
    arrive(a, A_CNT, A_ONE, C_O)
    ST.stamp('O written')
    a.e(f"s_add_u32 s{S_W}, s{S_W}, 4")
    gen_reduce(a, ST, S_W)

def gen_merged(a):
    kernel_header(a, KNAME)
    ST = Stamper(a, 1)
    a.e(f"""
    s_cmp_ge_u32 s2, 256
    s_cbranch_scc1 K_END
    """)
    if XMAP == 0:
        a.e(f"s_lshr_b32 s{S_RB}, s2, 3\ns_and_b32 s{S_J}, s2, 7")
    elif XMAP == 1:
        a.e(f"""
        s_and_b32 s{S_J}, s2, 3
        s_lshl_b32 s{S_J}, s{S_J}, 1
        s_bfe_u32 s{S_T0}, s2, 0x10003
        s_or_b32 s{S_J}, s{S_J}, s{S_T0}
        s_bfe_u32 s{S_RB}, s2, 0x10002
        s_lshl_b32 s{S_RB}, s{S_RB}, 4
        s_lshr_b32 s{S_T0}, s2, 4
        s_or_b32 s{S_RB}, s{S_RB}, s{S_T0}
        """)
    elif XMAP == 2:
        a.e(f"""
        s_and_b32 s{S_J}, s2, 1
        s_lshl_b32 s{S_J}, s{S_J}, 2
        s_bfe_u32 s{S_T0}, s2, 0x20003
        s_or_b32 s{S_J}, s{S_J}, s{S_T0}
        s_bfe_u32 s{S_RB}, s2, 0x20001
        s_lshl_b32 s{S_RB}, s{S_RB}, 3
        s_lshr_b32 s{S_T0}, s2, 5
        s_or_b32 s{S_RB}, s{S_RB}, s{S_T0}
        """)
    a.e(f"""
    s_lshl_b32 s3, s{S_RB}, 3
    s_or_b32 s3, s3, s{S_J}
    v_lshrrev_b32 v2, 6, v0
    v_and_b32 v{V_LANE}, 63, v0
    s_nop 0
    v_readfirstlane_b32 s{S_W}, v2
    """)
    ST.stamp('start'); ST.rstamp(30)
    gen_entry(a, ST)
    n0 = ST.n
    a.e(f"s_cmp_ge_u32 s{S_W}, 4\ns_cbranch_scc1 K_ATT")
    gen_pre_mlp(a, ST)
    gen_mlp(a, ST)
    ST.stamp('end'); ST.rstamp(31)
    if asmlib.STAMPS: a.e("s_waitcnt vmcnt(0)")
    ST.flush(62, 63, S_W, vtmp=200)
    a.e("s_endpgm")
    mlp_names = list(ST.names)
    a.label("K_ATT")
    ST.n = n0; ST.names = ST.names[:n0]
    a.e(f"s_sub_u32 s{S_W}, s{S_W}, 4")
    if CODEPF:
        a.e(f"""
        s_getpc_b64 s[44:45]
        """)
        a.label("CPF_PC")
        a.e(f"""
        s_sub_u32 s44, s44, CPF_PC-{KNAME}
        s_subb_u32 s45, s45, 0
        s_lshl_b32 s46, s{S_W}, 14
        v_lshlrev_b32 v253, 7, v{V_LANE}
        v_add_u32 v253, s46, v253
        v_min_u32 v253, K_LAST-{KNAME}, v253
        global_load_dword v254, v253, s[44:45]
        v_add_u32 v253, 8192, v253
        v_min_u32 v253, K_LAST-{KNAME}, v253
        global_load_dword v254, v253, s[44:45]
        """)
    gen_proj_att(a, ST)
    gen_att(a, ST)
    ST.stamp('end'); ST.rstamp(31)
    if asmlib.STAMPS: a.e("s_waitcnt vmcnt(0)")
    ST.flush(62, 63, S_W, vtmp=200)
    a.label("K_END")
    a.label("K_LAST")
    a.e("s_endpgm")
    return mlp_names, list(ST.names)

def build():
    a = Asm()
    hdr = open("gated_mix__grouped_kv_mqa__mixer_channel_mlp__prompt.s.ref").read().split("\n")
    top = [l for l in hdr if l.startswith(";") and "@launch" not in l and "Override launch" not in l and "grid=ceil" not in l]
    a.raw('.amdgcn_target "amdgcn-amd-amdhsa--gfx950"')
    a.raw(".text")
    names = gen_merged(a)
    txt = "\n".join(top) + f"\n; @launch grid=(256,1,1) block=(512,1,1) lds={LDS_BYTES}\n" + a.text() + '.section .rodata,"a"\n.p2align 6\n' + kernel_desc(KNAME, 256)
    return txt, names
if __name__ == "__main__":
    import sys
    asmlib.STAMPS = bool(os.environ.get("STAMPS"))
    out = sys.argv[1] if len(sys.argv) > 1 else "m.s"
    txt, names = build()
    open(out, "w").write(txt)
    open(out + ".mn", "w").write(",".join(names[0])); open(out + ".an", "w").write(",".join(names[1]))
    print("wrote", out)
```
